```python
import torch

def _softmax(x, axis=-1):
    return torch.softmax(x, dim=axis)

def _gelu(x):
    return torch.nn.functional.gelu(x, approximate='tanh')

def _silu(x):
    return torch.nn.functional.silu(x)

def _sigmoid(x):
    return torch.sigmoid(x)

def _layernorm(x, axis=-1, eps=1e-05):
    m = x.mean(dim=axis, keepdim=True)
    v = x.var(dim=axis, keepdim=True, unbiased=False)
    return (x - m) / torch.sqrt(v + eps)

def _scatter_add(tgt, idx, src, axis=0):
    return tgt.clone().index_add_(axis, idx, src)

def _segment_sum(src, seg, n):
    out = torch.zeros((n,) + src.shape[1:], dtype=src.dtype)
    return out.index_add_(0, seg, src)

def _pad(x, pw):
    flat = tuple((v for pair in reversed(pw) for v in pair))
    return torch.nn.functional.pad(x, flat)
kernel_name = 'adaLN_cond__ssm_conv_s4__geglu_ffn__prompt'

def setup_inputs():

    _w = lambda a: (lambda t: t.to(torch.bfloat16) if t.is_floating_point() else t)(torch.as_tensor(a))

    def _A_setup():
        B, L, D, N = (1, 2048, 576, 128)
        A_re = -(lambda _x: torch.exp(torch.as_tensor(_x)))((lambda *s: torch.randn(*s, dtype=torch.bfloat16) * 3.2)(D, N))
        A_im = torch.pi * (lambda *s: torch.randn(*s, dtype=torch.bfloat16) * 0.1)(D, N)
        B_re = (lambda *s: torch.randn(*s, dtype=torch.bfloat16) * 0.2)(D, N)
        B_im = (lambda *s: torch.randn(*s, dtype=torch.bfloat16) * 0.2)(D, N)
        C_re = (lambda *s: torch.randn(*s, dtype=torch.bfloat16) * 0.2)(D, N)
        C_im = (lambda *s: torch.randn(*s, dtype=torch.bfloat16) * 0.2)(D, N)
        log_dt = (lambda *s: torch.randn(*s, dtype=torch.bfloat16) * 0.1)(D) * 0.5 - 4.0
        Dskip = (lambda *s: torch.randn(*s, dtype=torch.bfloat16) * 0.1)(D)
        return {'u': _w((lambda *s: torch.randn(*s, dtype=torch.bfloat16) * 0.05)(B, L, D)), 'A_re': _w(A_re), 'A_im': _w(A_im), 'B_re': _w(B_re), 'B_im': _w(B_im), 'C_re': _w(C_re), 'C_im': _w(C_im), 'log_dt': _w(log_dt), 'Dskip': _w(Dskip)}
    _A_in = _A_setup()

    def _B_setup():
        B, S, D, F = (1, 2048, 576, 4608)
        return {'x': _w((lambda *s: torch.randn(*s, dtype=torch.bfloat16) * 0.05)(B, S, D)), 'w_gate': _w((lambda *s: torch.randn(*s, dtype=torch.bfloat16) * 0.05)(D, F)), 'w_up': _w((lambda *s: torch.randn(*s, dtype=torch.bfloat16) * 0.05)(D, F)), 'w_down': _w((lambda *s: torch.randn(*s, dtype=torch.bfloat16) * 0.05)(F, D))}
    _B_in = _B_setup()
    return {'A_u': _A_in['u'], 'A_A_re': _A_in['A_re'], 'A_A_im': _A_in['A_im'], 'A_B_re': _A_in['B_re'], 'A_B_im': _A_in['B_im'], 'A_C_re': _A_in['C_re'], 'A_C_im': _A_in['C_im'], 'A_log_dt': _A_in['log_dt'], 'A_Dskip': _A_in['Dskip'], 'B_x': _B_in['x'], 'B_w_gate': _B_in['w_gate'], 'B_w_up': _B_in['w_up'], 'B_w_down': _B_in['w_down'], 'c': _w((lambda *s: torch.randn(*s, dtype=torch.bfloat16) * 0.1)(1, 576) * 8.0), 'w_mod': _w((lambda *s: torch.randn(*s, dtype=torch.bfloat16) * 0.1)(576, 6 * 576) * 576 ** (-0.5) * 8.0)}

def reference(A_u, A_A_re, A_A_im, A_B_re, A_B_im, A_C_re, A_C_im, A_log_dt, A_Dskip, B_x, B_w_gate, B_w_up, B_w_down, c, w_mod):

    def _A_ref(u, A_re, A_im, B_re, B_im, C_re, C_im, log_dt, Dskip):
        Bsz, L, D = u.shape
        dt = torch.exp(log_dt)[:, None]
        A = A_re + 1j * A_im
        Bc = B_re + 1j * B_im
        Cc = C_re + 1j * C_im
        logdA = dt * A
        dB = dt * Bc
        l = (lambda x, dt: x.to(dt))(torch.arange(L), A_re.dtype)
        P = torch.exp(logdA[:, :, None] * l[None, None, :])
        K = torch.einsum('dn,dnl,dn->dl', Cc, P, dB).real
        L2 = 2 * L
        Kp = _pad(K, ((0, 0), (0, L)))
        up = (lambda x, *d: x.permute(*d))(u, 0, 2, 1)
        up = _pad(up, ((0, 0), (0, 0), (0, L)))
        Kf = (lambda x, axes=(-2, -1): torch.fft.rfft2(x.float(), dim=axes))(Kp[:, None, :], axes=(-2, -1))
        Uf = (lambda x, axes=(-2, -1): torch.fft.rfft2(x.float(), dim=axes))(up[:, :, None, :], axes=(-2, -1))
        Yf = Uf * Kf[None, :, :, :]
        y = (lambda x, s, axes=(-2, -1): torch.fft.irfft2(x, s=s, dim=axes).to(torch.bfloat16))(Yf, (1, L2), axes=(-2, -1))[:, :, 0, :L]
        y = (lambda x, *d: x.permute(*d))(y, 0, 2, 1) + u * Dskip[None, None, :]
        return y

    def _B_ref(x, w_gate, w_up, w_down):
        return _gelu(x @ w_gate) * (x @ w_up) @ w_down
    x = A_u
    mod = (_silu(c) @ w_mod).reshape(c.shape[0], 6, 1, -1)
    sa, ca, ga, sb, cb, gb = (mod[:, 0].clone(), mod[:, 1].clone(), mod[:, 2].clone(), mod[:, 3].clone(), mod[:, 4].clone(), mod[:, 5].clone())
    h = _layernorm(x, axis=-1) * (1 + ca) + sa
    x = x + ga * _A_ref(h, A_A_re, A_A_im, A_B_re, A_B_im, A_C_re, A_C_im, A_log_dt, A_Dskip)
    h = _layernorm(x, axis=-1) * (1 + cb) + sb
    x = x + gb * _B_ref(h, B_w_gate, B_w_up, B_w_down)
    return x
```

```python
import re

REG_RE = re.compile(r'^(-|abs\()?([vsa])(\d+)\)?$')
RNG_RE = re.compile(r'^(-|abs\()?([vsa])\[(\d+):(\d+)\]\)?$')


def regs_of(op):
    op = op.strip()
    m = REG_RE.match(op)
    if m:
        return {(m.group(2), int(m.group(3)))}
    m = RNG_RE.match(op)
    if m:
        return {(m.group(2), i) for i in range(int(m.group(3)), int(m.group(4)) + 1)}
    if op == 'vcc':
        return {('s', 'vcc')}
    if op == 'exec':
        return {('s', 'exec')}
    if op == 'm0':
        return {('s', 'm0')}
    return set()


def split_ops(s):
    out, depth, cur = [], 0, ''
    for ch in s:
        if ch in '[(':
            depth += 1
        if ch in '])':
            depth -= 1
        if ch == ',' and depth == 0:
            out.append(cur.strip())
            cur = ''
        else:
            cur += ch
    if cur.strip():
        out.append(cur.strip())
    return out


TRANS = ('v_exp_f32', 'v_log_f32', 'v_rcp_f32', 'v_rsq_f32', 'v_sqrt_f32', 'v_sin_f32', 'v_cos_f32')


class Ins:
    __slots__ = ('text', 'mn', 'kind', 'dst', 'src', 'passes', 'trans', 'dpp', 'wide_store', 'lds_dma', 'nstates')

    def __init__(self, text):
        self.text = text
        t = text.split(';')[0].strip()
        parts = t.split(None, 1)
        self.mn = mn = parts[0]
        rest = parts[1] if len(parts) > 1 else ''
        ops = split_ops(rest)
        mods = ''
        if ops:
            last = ops[-1].split()
            if len(last) > 1:
                ops[-1] = last[0]
                mods = ' '.join(last[1:])
        self.dst, self.src = set(), set()
        self.passes = 0
        self.trans = False
        self.dpp = False
        self.wide_store = False
        self.lds_dma = False
        self.nstates = 1
        R = [regs_of(o) for o in ops]
        if mn.startswith('v_mfma'):
            self.kind = 'mfma'
            self.dst = R[0]
            self.src = R[1] | R[2] | R[3]
            self.passes = 8 if '32x32' in mn else 4
            if 'x2_f32' in mn or 'x1_' in mn:
                self.passes = 16
        elif mn.startswith('v_'):
            self.kind = 'valu'
            base = mn.replace('_e32', '').replace('_e64', '').replace('_dpp', '').replace('_sdwa', '')
            self.trans = base in TRANS
            self.dpp = ('row_' in mods or 'quad_perm' in mods or 'wave_' in mods or mn.endswith('_dpp'))
            if base.startswith('v_cmp'):
                self.dst = R[0]
                self.src = set().union(*R[1:])
                if base.startswith('v_cmpx'):
                    self.dst = self.dst | {('s', 'exec')}
            elif base.startswith('v_permlane') and 'swap' in base:
                self.dst = R[0] | R[1]
                self.src = R[0] | R[1]
            elif base in ('v_add_co_u32', 'v_sub_co_u32', 'v_addc_co_u32', 'v_subb_co_u32'):
                self.dst = R[0] | R[1]
                self.src = set().union(*R[2:])
            elif base in ('v_fmac_f32', 'v_dot2c_f32_bf16', 'v_writelane_b32'):
                self.dst = R[0]
                self.src = set().union(*R)
            else:
                self.dst = R[0]
                self.src = set().union(*R[1:]) if len(R) > 1 else set()
                if base.startswith('v_cndmask') and len(R) == 3:
                    self.src |= {('s', 'vcc')}
        elif mn.startswith('ds_'):
            self.kind = 'ds'
            if mn.startswith('ds_read') or mn.startswith('ds_bpermute') or mn.startswith('ds_swizzle') or mn.startswith('ds_permute'):
                self.dst = R[0]
                self.src = set().union(*R[1:])
            else:
                self.src = set().union(*R)
        elif mn.startswith('buffer_') or mn.startswith('global_'):
            self.kind = 'vmem'
            allm = mods + ' ' + rest
            if mn in ('buffer_wbl2', 'buffer_inv'):
                pass
            elif mn.startswith('global_load_lds') or (mn.startswith('buffer_load') and re.search(r'\blds\b', allm)):
                self.lds_dma = True
                self.src = set().union(*R) | {('s', 'm0')}
            elif '_load' in mn:
                self.dst = R[0]
                self.src = set().union(*R[1:])
            elif '_store' in mn:
                self.src = set().union(*R)
                self.wide_store = mn.endswith('x4') or mn.endswith('x3')
                if self.wide_store:
                    self.dst = set()
            elif '_atomic' in mn:
                self.src = set().union(*R)
                if 'sc0' in allm:
                    self.dst = R[0]
        elif mn == 's_nop':
            self.kind = 'nop'
            self.nstates = int(ops[0], 0) + 1
        elif mn in ('s_waitcnt', 's_barrier', 's_endpgm', 's_setprio', 's_sleep'):
            self.kind = 'ctl'
        elif mn.startswith('s_cbranch') or mn == 's_branch':
            self.kind = 'br'
        elif mn.startswith('s_load') or mn.startswith('s_buffer_load') or mn in ('s_memtime', 's_memrealtime'):
            self.kind = 'smem'
            self.dst = R[0]
            self.src = set().union(*R[1:]) if len(R) > 1 else set()
        elif mn.startswith('s_'):
            self.kind = 'salu'
            if mn.startswith('s_cmp') or mn.startswith('s_bitcmp'):
                self.src = set().union(*R)
            elif 'saveexec' in mn:
                self.dst = R[0] | {('s', 'exec')}
                self.src = set().union(*R[1:]) | {('s', 'exec')}
            else:
                self.dst = R[0] if R else set()
                self.src = set().union(*R[1:]) if len(R) > 1 else set()
        else:
            raise ValueError('unknown instruction ' + text)

    def store_data(self):
        t = self.text.split(';')[0].strip()
        ops = split_ops(t.split(None, 1)[1])
        if self.mn.startswith('buffer_'):
            return regs_of(ops[0])
        return regs_of(ops[1].split()[0])


def need_states(p, c):
    n = 0
    vdst = {r for r in p.dst if r[0] in 'va'}
    sdst = {r for r in p.dst if r[0] == 's'}
    if p.kind == 'valu':
        if c.kind == 'mfma' and vdst & c.src:
            n = max(n, 2)
        if c.kind == 'mfma' and ('s', 'exec') in sdst:
            n = max(n, 4)
        if c.kind == 'valu':
            if c.dpp and vdst & c.src:
                n = max(n, 2)
            if c.dpp and ('s', 'exec') in sdst:
                n = max(n, 5)
            if c.mn.startswith('v_permlane') and vdst & c.src:
                n = max(n, 2)
            if (c.mn.startswith('v_readlane') or c.mn.startswith('v_readfirstlane')) and vdst & c.src:
                n = max(n, 1)
            if (c.mn.startswith('v_readlane') or c.mn.startswith('v_writelane')) and sdst & c.src:
                n = max(n, 4)
            if sdst & c.src:
                n = max(n, 2)
            if p.trans and not c.trans and vdst & c.src:
                n = max(n, 1)
            if p.trans and c.trans and vdst & c.src:
                n = max(n, 1)
        if c.kind == 'vmem' and sdst & c.src:
            n = max(n, 5)
        if c.kind in ('salu', 'br') and sdst & c.src:
            n = max(n, 3)
        if c.kind == 'br' and ('s', 'vcc') in sdst and 'vcc' in c.mn:
            n = max(n, 5)
        if c.kind == 'br' and ('s', 'exec') in sdst and 'exec' in c.mn:
            n = max(n, 5)
    if p.kind == 'mfma':
        tbl = {4: (8, 6), 8: (12, 10), 16: (20, 18)}[p.passes]
        if c.kind == 'mfma':
            t = c.text.split(';')[0]
            ops = split_ops(t.split(None, 1)[1])
            ab = regs_of(ops[1]) | regs_of(ops[2])
            cc = regs_of(ops[3].split()[0])
            if vdst & ab:
                n = max(n, tbl[0])
            if vdst & cc and not (cc == vdst and c.passes == p.passes):
                n = max(n, tbl[1])
            if vdst & c.dst and not (cc == vdst and c.dst == vdst) and not (vdst & cc):
                n = max(n, tbl[1])
        elif c.kind in ('valu', 'ds', 'vmem'):
            if vdst & (c.src | c.dst):
                n = max(n, tbl[0])
        if c.kind == 'valu':
            t = p.text.split(';')[0]
            ops = split_ops(t.split(None, 1)[1])
            cc = regs_of(ops[3].split()[0])
            if cc & c.dst:
                n = max(n, {4: 3, 8: 7, 16: 15}[p.passes])
    if p.kind == 'salu' and ('s', 'm0') in sdst and c.lds_dma:
        n = max(n, 1)
    if p.kind == 'vmem' and p.wide_store:
        if c.kind == 'valu' and p.store_data() & c.dst:
            n = max(n, 2)
        elif p.store_data() & c.dst:
            n = max(n, 1)
    return n


class Tok:
    __slots__ = ('cls', 'idx')

    def __init__(self, cls, idx):
        self.cls, self.idx = cls, idx


class G:
    def __init__(self):
        self.items = []
        self.nvm = 0
        self.nlg = 0
        self.vm_done = 0
        self.lg_done = 0
        self.smem_out = False

    def raw(self, s):
        self.items.append(s)

    def label(self, name):
        self.items.append(name + ':')

    def i(self, text):
        tok = None
        for line in text.strip().split('\n'):
            line = line.strip()
            if not line or line.startswith(';'):
                continue
            if line.endswith(':'):
                self.items.append(line)
                continue
            ins = Ins(line)
            self.items.append(ins)
            if ins.kind == 'vmem':
                self.nvm += 1
                tok = Tok('vm', self.nvm)
            elif ins.kind == 'ds':
                self.nlg += 1
                tok = Tok('lg', self.nlg)
            elif ins.kind == 'smem':
                self.smem_out = True
            elif ins.mn == 's_waitcnt':
                m = re.search(r'vmcnt\((\d+)\)', line)
                if m:
                    self.vm_done = max(self.vm_done, self.nvm - int(m.group(1)))
                m = re.search(r'lgkmcnt\((\d+)\)', line)
                if m:
                    if int(m.group(1)) == 0:
                        self.smem_out = False
                        self.lg_done = self.nlg
                    elif not self.smem_out:
                        self.lg_done = max(self.lg_done, self.nlg - int(m.group(1)))
        return tok

    def wait(self, *toks):
        vm = max([t.idx for t in toks if t is not None and t.cls == 'vm'], default=0)
        lg = max([t.idx for t in toks if t is not None and t.cls == 'lg'], default=0)
        s = []
        if vm > self.vm_done:
            s.append('vmcnt(%d)' % min(63, self.nvm - vm))
        if lg > self.lg_done:
            n = 0 if self.smem_out else min(15, self.nlg - lg)
            s.append('lgkmcnt(%d)' % n)
        if s:
            self.i('s_waitcnt ' + ' '.join(s))

    def wait_all(self):
        self.i('s_waitcnt vmcnt(0) lgkmcnt(0)')

    def wait_lg0(self):
        self.i('s_waitcnt lgkmcnt(0)')

    def reset_counts(self):
        self.vm_done = self.nvm
        self.lg_done = self.nlg

    def finalize(self, window=24):
        out = []
        hist = []
        nnop = 0
        for it in self.items:
            if isinstance(it, str):
                out.append(it)
                continue
            need = 0
            dist = 0
            for p in reversed(hist):
                n = need_states(p, it)
                if n > dist:
                    need = max(need, n - dist)
                dist += p.nstates
                if dist >= window:
                    break
            while need > 0:
                k = min(need, 16)
                nop = Ins('s_nop %d' % (k - 1))
                out.append(nop)
                hist.append(nop)
                need -= k
                nnop += 1
            out.append(it)
            hist.append(it)
            if len(hist) > 64:
                hist = hist[-48:]
        self.nnop = nnop
        lines = []
        for it in out:
            if isinstance(it, str):
                lines.append(it)
            else:
                lines.append('\t' + it.text)
        return '\n'.join(lines) + '\n'


def vr(a, n=1):
    return 'v%d' % a if n == 1 else 'v[%d:%d]' % (a, a + n - 1)


def ar(a, n=1):
    return 'a%d' % a if n == 1 else 'a[%d:%d]' % (a, a + n - 1)


def sr(a, n=1):
    return 's%d' % a if n == 1 else 's[%d:%d]' % (a, a + n - 1)


def kstart(name):
    return '.globl %s\n.p2align 8\n.type %s,@function\n%s:' % (name, name, name)


def kdesc(name, vgpr, accum, sgpr=96):
    return ('.amdhsa_kernel %s\n  .amdhsa_next_free_vgpr %d\n  .amdhsa_next_free_sgpr %d\n  .amdhsa_accum_offset %d\n'
            '  .amdhsa_group_segment_fixed_size 0\n  .amdhsa_kernarg_size 144\n  .amdhsa_user_sgpr_count 2\n'
            '  .amdhsa_user_sgpr_kernarg_segment_ptr 1\n  .amdhsa_system_sgpr_workgroup_id_x 1\n'
            '  .amdhsa_float_denorm_mode_32 3\n.end_amdhsa_kernel\n') % (name, vgpr, sgpr, accum)


import os
STAMPS = os.environ.get('STAMPS', '') != ''

def stamp(g, k):
    if not STAMPS: return
    g.i('s_memtime s[94:95]\ns_memrealtime s[92:93]\ns_waitcnt lgkmcnt(0)\ns_mov_b32 s%d, s94\ns_mov_b32 s%d, s92' % (70 + 2 * k, 71 + 2 * k))

def stamp_rt(g, k):
    pass

def stamp_flush(g, n, wg, vtmp=250):
    if not STAMPS: return
    n = min(n, 11)
    lab = 'L_stamp_%d' % len(g.items)
    g.i('s_cmp_lg_u32 s2, %d\ns_cbranch_scc1 %s' % (wg, lab))
    g.i('s_load_dwordx2 s[68:69], s[0:1], 128\ns_waitcnt lgkmcnt(0)')
    g.i('v_mov_b32 v%d, 0' % vtmp)
    g.i('v_cmp_eq_u32 vcc, 0, v0\ns_and_saveexec_b64 s[66:67], vcc\ns_cbranch_execz %s_r' % lab)
    for k in range(2 * n):
        g.i('v_mov_b32 v%d, s%d\nglobal_store_dword v%d, v%d, s[68:69] offset:%d' % (vtmp + 1, 70 + k, vtmp, vtmp + 1, 4 * k))
    g.label(lab + '_r')
    g.i('s_mov_b64 exec, s[66:67]')
    g.label(lab)
```

```python
from glib import *
from layout import *
import numpy as np

LOG2E = 0x3fb8aa3b
INV2PI = 0x3e22f983

def f2u(x): return int(np.float32(x).view(np.uint32))

K1_NC, K1_NA, K1_NB = 288, 64, 108
K1_GRID = K1_NC + K1_NA + K1_NB
K1_LDS = 75776

def bf16_round_int(l):
    u = np.float32(l).view(np.uint32)
    r = ((int(u) + 0x7FFF + ((int(u) >> 16) & 1)) >> 16) << 16
    return int(np.uint32(r).view(np.float32))

def gather_table():
    t = []
    for i in range(8 * 274):
        l = KC0 - i
        t.append(2 * bf16_round_int(l) if 0 <= l <= 2047 else 4600)
    return t

def ws_srd(g, s, ptr):
    g.i('s_mov_b32 %s, %s\ns_mov_b32 %s, %s\ns_mov_b32 %s, %d\ns_mov_b32 %s, 0x20000' % (sr(s), sr(ptr), sr(s + 1), sr(ptr + 1), sr(s + 2), WS_END, sr(s + 3)))

def srd(g, s, ptr, nbytes):
    g.i('s_mov_b32 %s, %s\ns_mov_b32 %s, %s\ns_mov_b32 %s, %d\ns_mov_b32 %s, 0x20000' % (sr(s), sr(ptr), sr(s + 1), sr(ptr + 1), sr(s + 2), nbytes, sr(s + 3)))

def rb_inplace(g, v, tmp=None):
    g.i('v_cvt_pk_bf16_f32 %s, %s, %s' % (vr(v), vr(v), vr(v)))
    g.i('v_lshlrev_b32 %s, 16, %s' % (vr(v), vr(v)))

def role_B(g):
    g.i('''
    s_load_dwordx2 s[4:5], s[0:1], %d
    s_load_dwordx2 s[6:7], s[0:1], %d
    s_load_dwordx2 s[8:9], s[0:1], %d
    s_sub_u32 s3, s2, %d
    s_mul_i32 s20, s3, 2428
    s_lshr_b32 s20, s20, 16          ; kq
    s_mul_i32 s21, s20, 27
    s_sub_u32 s21, s3, s21           ; cc
    v_lshrrev_b32 v1, 4, v0          ; rg
    v_and_b32 v2, 15, v0             ; cl
    s_mul_i32 s22, s20, 144
    v_add_u32 v3, s22, v1            ; row0
    s_movk_i32 s23, 6912
    v_mul_lo_u32 v4, v3, s23
    s_lshl_b32 s24, s21, 8
    v_lshl_add_u32 v5, v2, 4, s24
    v_add_u32 v4, v4, v5             ; w_mod byte offset
    v_lshlrev_b32 v3, 1, v3          ; c byte offset
    s_waitcnt lgkmcnt(0)
    ''' % (KA['c'], KA['wmod'], KA['ws'], K1_NC + K1_NA))
    srd(g, 12, 4, 1152)
    srd(g, 16, 6, 576 * 6912)
    ws_srd(g, 24, 8)
    ct, wt = [], []
    for i in range(9):
        ct.append(g.i('buffer_load_ushort v%d, v3, s[12:15], 0 offen offset:%d' % (10 + i, 32 * i)))
    for i in range(9):
        g.i('s_mov_b32 s30, %d' % (110592 * i))
        wt.append(g.i('buffer_load_dwordx4 %s, v4, s[16:19], s30 offen' % vr(24 + 4 * i, 4)))
    for j in range(8): g.i('v_mov_b32 v%d, 0' % (64 + j))
    g.i('s_mov_b32 s31, 0x%x' % (LOG2E | 0x80000000))
    g.wait(ct[-1])
    for i in range(9):
        c = 10 + i
        g.i('v_lshlrev_b32 v%d, 16, v%d' % (c, c))
    for i in range(9): g.i('v_mul_f32 v%d, s31, v%d' % (72 + i, 10 + i))
    for i in range(9): g.i('v_exp_f32 v%d, v%d' % (72 + i, 72 + i))
    for i in range(9): g.i('v_add_f32 v%d, 1.0, v%d' % (72 + i, 72 + i))
    for i in range(9): g.i('v_rcp_f32 v%d, v%d' % (72 + i, 72 + i))
    for i in range(9): g.i('v_mul_f32 v%d, v%d, v%d' % (10 + i, 10 + i, 72 + i))
    for i in range(9): g.i('v_cvt_pk_bf16_f32 v%d, v%d, v%d' % (10 + i, 10 + i, 10 + i))
    for i in range(9): g.i('v_lshlrev_b32 v%d, 16, v%d' % (10 + i, 10 + i))
    g.i('s_mov_b32 s32, 0xffff0000')
    for i in range(9):
        g.wait(wt[i])
        for j in range(4):
            w = 24 + 4 * i + j
            g.i('v_lshlrev_b32 v82, 16, v%d\nv_and_b32 v83, s32, v%d' % (w, w))
            g.i('v_fmac_f32 v%d, v82, v%d\nv_fmac_f32 v%d, v83, v%d' % (64 + 2 * j, 10 + i, 65 + 2 * j, 10 + i))
    g.i('v_lshlrev_b32 v6, 9, v1\nv_lshl_add_u32 v6, v2, 5, v6')
    g.i('ds_write_b128 v6, v[64:67]\nds_write_b128 v6, v[68:71] offset:16')
    g.i('s_waitcnt lgkmcnt(0)\ns_barrier')
    g.i('v_cmp_gt_u32 vcc, 128, v0\ns_and_saveexec_b64 s[34:35], vcc\ns_cbranch_execz L_k1B_end')
    g.i('v_lshlrev_b32 v7, 2, v0')
    toks = [g.i('ds_read_b32 v%d, v7 offset:%d' % (24 + r, 512 * r)) for r in range(16)]
    g.wait(toks[-1])
    for st in (8, 4, 2, 1):
        for r in range(st): g.i('v_add_f32 v%d, v%d, v%d' % (24 + r, 24 + r, 24 + r + st))
    g.i('''
    s_mul_i32 s33, s20, 13824
    s_lshl_b32 s36, s21, 9
    s_add_u32 s33, s33, s36
    buffer_store_dword v24, v7, s[24:27], s33 offen
    L_k1B_end:
    s_endpgm
    ''')

def role_A(g):
    RS = 1184
    RAW, FP = 16, 56
    g.i('''
    s_load_dwordx2 s[4:5], s[0:1], %d
    s_load_dwordx2 s[8:9], s[0:1], %d
    s_sub_u32 s3, s2, %d              ; tb
    v_lshrrev_b32 v1, 3, v0           ; row
    v_and_b32 v2, 7, v0               ; sub
    s_lshl_b32 s20, s3, 5
    v_add_u32 v3, s20, v1
    s_movk_i32 s21, 1152
    v_mul_lo_u32 v3, v3, s21
    v_lshl_add_u32 v3, v2, 4, v3      ; global byte offset
    s_movk_i32 s21, %d
    v_mul_lo_u32 v4, v1, s21
    v_lshl_add_u32 v4, v2, 4, v4      ; LDS write address
    s_waitcnt lgkmcnt(0)
    ''' % (KA['x'], KA['ws'], K1_NC, RS))
    srd(g, 12, 4, XBYTES)
    ws_srd(g, 24, 8)
    lt = [g.i('buffer_load_dwordx4 %s, v3, s[12:15], 0 offen offset:%d' % (vr(RAW + 4 * i, 4), 128 * i)) for i in range(9)]
    g.i('s_mov_b32 s32, 0xffff0000\nv_mov_b32 v6, 0\nv_mov_b32 v7, 0')
    for i in range(9):
        g.wait(lt[i])
        g.i('ds_write_b128 v4, %s offset:%d' % (vr(RAW + 4 * i, 4), 128 * i))
        for j in range(4):
            w = RAW + 4 * i + j; f = FP + 8 * i + 2 * j
            g.i('v_lshlrev_b32 v%d, 16, v%d\nv_and_b32 v%d, s32, v%d' % (f, w, f + 1, w))
        for j in range(4):
            f = FP + 8 * i + 2 * j
            g.i('v_pk_add_f32 v[6:7], v[6:7], %s' % vr(f, 2))
    def red8(v):
        g.i('v_add_f32_dpp %s, %s, %s quad_perm:[1,0,3,2] row_mask:0xf bank_mask:0xf' % (v, v, v))
        g.i('v_add_f32_dpp %s, %s, %s quad_perm:[2,3,0,1] row_mask:0xf bank_mask:0xf' % (v, v, v))
        g.i('v_add_f32_dpp %s, %s, %s row_half_mirror row_mask:0xf bank_mask:0xf' % (v, v, v))
    g.i('v_add_f32 v6, v6, v7')
    red8('v6')
    g.i('s_mov_b32 s33, 0x%x' % f2u(1.0 / 576))
    g.i('v_mul_f32 v8, s33, v6        ; mean')
    g.i('v_sub_f32 v10, 0, v8\nv_sub_f32 v11, 0, v8\nv_mov_b32 v6, 0\nv_mov_b32 v7, 0')
    for i in range(36):
        f = FP + 2 * i
        t = 128 + 2 * (i % 4)
        g.i('v_pk_add_f32 %s, %s, v[10:11]' % (vr(t, 2), vr(f, 2)))
        g.i('v_pk_fma_f32 v[6:7], %s, %s, v[6:7]' % (vr(t, 2), vr(t, 2)))
    g.i('v_add_f32 v6, v6, v7')
    red8('v6')
    g.i('v_mul_f32 v6, s33, v6        ; var')
    rb_inplace(g, 6)
    g.i('v_add_f32 v6, 0x%x, v6' % f2u(1e-5))
    rb_inplace(g, 6)
    g.i('v_sqrt_f32 v6, v6')
    rb_inplace(g, 6)
    g.i('v_rcp_f32 v12, v6')
    rb_inplace(g, 8)
    g.i('v_sub_f32 v10, 0, v8\nv_sub_f32 v11, 0, v8\nv_mov_b32 v13, v12')
    for i in range(36):
        f = FP + 2 * i
        g.i('v_pk_add_f32 %s, %s, v[10:11]' % (vr(f, 2), vr(f, 2)))
    for i in range(36):
        f = FP + 2 * i
        g.i('v_cvt_pk_bf16_f32 v%d, v%d, v%d' % (RAW + i, f, f + 1))
    for i in range(36):
        f = FP + 2 * i; w = RAW + i
        g.i('v_lshlrev_b32 v%d, 16, v%d\nv_and_b32 v%d, s32, v%d' % (f, w, f + 1, w))
    for i in range(36):
        f = FP + 2 * i
        g.i('v_pk_mul_f32 %s, %s, v[12:13]' % (vr(f, 2), vr(f, 2)))
    for i in range(36):
        f = FP + 2 * i
        g.i('v_cvt_pk_bf16_f32 v%d, v%d, v%d' % (RAW + i, f, f + 1))
        if i % 4 == 3:
            g.i('ds_write_b128 v4, %s offset:%d' % (vr(RAW + i - 3, 4), 37888 + 128 * (i // 4)))
    g.i('''
    v_and_b32 v1, 63, v0
    v_lshrrev_b32 v2, 6, v0           ; wave
    v_and_b32 v3, 15, v1              ; i
    v_lshrrev_b32 v5, 4, v1           ; q
    v_lshrrev_b32 v6, 2, v3
    v_lshl_add_u32 v6, v5, 3, v6      ; row = 8q + (i>>2)
    s_movk_i32 s21, %d
    v_mul_lo_u32 v6, v6, s21
    v_and_b32 v7, 3, v3
    v_lshl_add_u32 v6, v7, 3, v6
    v_lshl_add_u32 v6, v2, 5, v6      ; + wave*32 bytes (d tile = wave + 4k)
    v_lshlrev_b32 v7, 6, v3
    v_lshl_add_u32 v7, v5, 4, v7
    v_lshl_add_u32 v7, v2, 10, v7     ; store offset: wave*1024 + i*64 + q*16
    s_mul_i32 s22, s3, 36864
    s_waitcnt lgkmcnt(0)
    s_barrier
    ''' % RS)
    for arr, (lo, wo) in enumerate(((0, WS_XT), (37888, WS_XNT))):
        toks = []
        for k in range(9):
            r = 16 + 4 * k + 40 * arr
            g.i('ds_read_b64_tr_b16 %s, v6 offset:%d' % (vr(r, 2), lo + 128 * k))
            toks.append(g.i('ds_read_b64_tr_b16 %s, v6 offset:%d' % (vr(r + 2, 2), lo + 128 * k + 4 * RS)))
        for k in range(9):
            r = 16 + 4 * k + 40 * arr
            g.i('s_add_u32 s23, s22, %d' % (wo + 4096 * k))
            g.wait(toks[k])
            g.i('buffer_store_dwordx4 %s, v7, s[24:27], s23 offen' % vr(r, 4))
    g.i('s_endpgm')

def role_C(g):
    UOFF = [4608, 34176]; VOFF_REL = 24 * 528; RS = 528
    g.i('''
    s_load_dwordx4 s[4:7], s[0:1], %d       ; are, aim
    s_load_dwordx4 s[8:11], s[0:1], %d      ; bre, bim
    s_load_dwordx4 s[12:15], s[0:1], %d     ; cre, cim
    s_load_dwordx2 s[16:17], s[0:1], %d     ; log_dt
    s_load_dwordx2 s[18:19], s[0:1], %d     ; ws
    v_lshrrev_b32 v2, 6, v0
    v_and_b32 v1, 63, v0                    ; lane
    s_nop 0
    v_readfirstlane_b32 s20, v2             ; wave
    s_nop 3
    s_lshr_b32 s21, s20, 1                  ; channel in WG
    s_and_b32 s22, s20, 1                   ; mode half
    s_lshl_b32 s23, s2, 1
    s_add_u32 s23, s23, s21                 ; d
    s_lshl_b32 s24, s22, 6
    v_add_u32 v3, s24, v1                   ; n (also gather chunk index within the round)
    s_lshl_b32 s25, s23, 8
    v_lshl_add_u32 v4, v3, 1, s25           ; byte offset in [576][128] bf16
    s_lshl_b32 s26, s23, 1
    v_mov_b32 v5, s26
    s_getpc_b64 s[28:29]
    L_k1C_pc:
    s_add_u32 s28, s28, K1_TBL-L_k1C_pc
    s_addc_u32 s29, s29, 0
    s_waitcnt lgkmcnt(0)
    ''' % (KA['are'], KA['bre'], KA['cre'], KA['ldt'], KA['ws']))
    t = []
    for k, b in enumerate((4, 6, 8, 10, 12, 14)):
        t.append(g.i('global_load_ushort v%d, v4, %s' % (10 + k, sr(b, 2))))
    t.append(g.i('global_load_ushort v16, v5, s[16:17]'))
    g.i('v_lshlrev_b32 v6, 4, v3\nv_lshlrev_b32 v7, 4, v1\nv_min_u32 v7, 256, v7')
    TB = 200
    tt = []
    tt.append(g.i('global_load_dwordx4 %s, v6, s[28:29]\nglobal_load_ushort v%d, v6, s[28:29] offset:16' % (vr(TB, 4), TB + 4)))
    tt.append(g.i('global_load_dwordx4 %s, v6, s[28:29] offset:2048\nglobal_load_ushort v%d, v6, s[28:29] offset:2064' % (vr(TB + 6, 4), TB + 10)))
    g.i('v_add_u32 v7, 4096, v7')
    tt.append(g.i('global_load_dwordx4 %s, v7, s[28:29]\nglobal_load_ushort v%d, v7, s[28:29] offset:16' % (vr(TB + 12, 4), TB + 16)))
    ws_srd(g, 32, 18)
    g.i('s_mul_i32 s30, s21, %d\ns_add_u32 s30, s30, %d' % (UOFF[1] - UOFF[0], UOFF[0]))
    g.i('v_lshl_add_u32 v8, v3, 2, s30')
    g.i('s_mov_b32 s31, 0x%x\ns_mov_b32 s36, 0x%x' % (LOG2E, INV2PI))
    g.wait(t[-1])
    for k in range(7): g.i('v_lshlrev_b32 v%d, 16, v%d' % (10 + k, 10 + k))
    g.i('v_mul_f32 v16, s31, v16\nv_exp_f32 v16, v16')
    rb_inplace(g, 16)
    g.i('''
    v_mul_f32 v10, v16, v10                 ; zre
    v_mul_f32 v11, v16, v11                 ; zim
    v_mul_f32 v12, v16, v12
    v_mul_f32 v13, v16, v13
    v_mul_f32 v20, v14, v12
    v_mul_f32 v21, v14, v13
    v_fma_f32 v20, -v15, v13, v20
    v_fma_f32 v21, v15, v12, v21
    v_mul_f32 v10, s31, v10
    v_mul_f32 v11, s36, v11
    ''')
    def cexp(dst, scale):
        if scale != 1:
            g.i('v_mul_f32 v17, 0x%x, v10\nv_mul_f32 v18, 0x%x, v11' % (f2u(scale), f2u(scale)))
        else:
            g.i('v_mov_b32 v17, v10\nv_mov_b32 v18, v11')
        g.i('v_rndne_f32 v19, v18\nv_exp_f32 v17, v17\nv_sub_f32 v18, v18, v19')
        g.i('v_cos_f32 v%d, v18\nv_sin_f32 v%d, v18' % (dst, dst + 1))
        g.i('v_mul_f32 v%d, v17, v%d\nv_mul_f32 v%d, v17, v%d' % (dst, dst, dst + 1, dst + 1))
    def cmul(d, a, b):
        g.i('v_mul_f32 v%d, v%d, v%d' % (d, a, b))
        g.i('v_mul_f32 v%d, v%d, v%d' % (d + 1, a, b + 1))
        g.i('v_fma_f32 v%d, -v%d, v%d, v%d' % (d, a + 1, b + 1, d))
        g.i('v_fma_f32 v%d, v%d, v%d, v%d' % (d + 1, a + 1, b, d + 1))
    pk = [0]
    def putU(row, a):
        p = 60 + pk[0] % 8; pk[0] += 1
        g.i('v_cvt_pk_bf16_f32 v%d, v%d, -v%d' % (p, a, a + 1))
        g.i('ds_write_b32 v8, v%d offset:%d' % (p, row * RS))
    def putV(row, a):
        p = 60 + pk[0] % 8; pk[0] += 1
        g.i('v_cvt_pk_bf16_f32 v%d, v%d, v%d' % (p, a, a + 1))
        g.i('ds_write_b32 v8, v%d offset:%d' % (p, VOFF_REL + row * RS))
    Z, W256, W2, W4, W8 = 22, 24, 26, 28, 30
    cexp(Z, 1); cexp(W256, 256.0)
    cmul(W2, Z, Z); cmul(W4, W2, W2); cmul(W8, W4, W4)
    CB = 20
    putU(0, CB)
    x, y = 32, 34
    cur = CB
    for i in range(1, 8):
        nxt = x if cur != x else y
        cmul(nxt, cur, Z); putU(i, nxt); cur = nxt
    A, B = 36, 38
    cmul(A, CB, W256); putU(8, A)
    cur = A
    for i in range(1, 4):
        nxt = x if cur != x else y
        cmul(nxt, cur, W2); putU(8 + i, nxt); cur = nxt
    cmul(B, A, W256); putU(12, B); cmul(x, B, W4); putU(13, x)
    cmul(A, B, W256); putU(14, A); cmul(x, A, W4); putU(15, x)
    cur = A
    for i in range(5):
        nxt = B if cur == A else A
        cmul(nxt, cur, W256); putU(16 + i, nxt); cur = nxt
    g.i('v_mov_b32 v%d, 1.0\nv_mov_b32 v%d, 0' % (x, x + 1))
    putV(0, x); putV(1, W8)
    cur = W8
    for j in range(2, 32):
        nxt = x if cur != x else y
        cmul(nxt, cur, W8); putV(j, nxt); cur = nxt
    g.i('s_waitcnt lgkmcnt(0)\ns_barrier')
    g.reset_counts() if False else None
    g.i('s_cmp_lg_u32 s22, 0\ns_cbranch_scc1 L_k1C_gather')
    g.i('''
    v_and_b32 v9, 31, v1                    ; row / column index
    v_lshrrev_b32 v17, 5, v1                ; half
    s_movk_i32 s37, %d
    v_mul_lo_u32 v18, v9, s37
    v_lshl_add_u32 v18, v17, 4, v18
    v_add_u32 v18, s30, v18
    ''' % RS)
    ACC = 64
    fr = []
    for ks in range(16):
        ra = 96 + 8 * (ks % 8)
        if ks >= 8: pass
        g.i('ds_read_b128 %s, v18 offset:%d' % (vr(ra, 4), 32 * ks))
        fr.append(g.i('ds_read_b128 %s, v18 offset:%d' % (vr(ra + 4, 4), VOFF_REL + 32 * ks)))
        if ks >= 7 or ks == 15:
            k0 = ks - 7
            g.wait(fr[k0])
            r0 = 96 + 8 * (k0 % 8)
            g.i('v_mfma_f32_32x32x16_bf16 %s, %s, %s, %s' % (vr(ACC, 16), vr(r0, 4), vr(r0 + 4, 4), '0' if k0 == 0 else vr(ACC, 16)))
    for k0 in range(9, 16):
        g.wait(fr[k0])
        r0 = 96 + 8 * (k0 % 8)
        g.i('v_mfma_f32_32x32x16_bf16 %s, %s, %s, %s' % (vr(ACC, 16), vr(r0, 4), vr(r0 + 4, 4), vr(ACC, 16)))
    g.i('''
    s_lshl_b32 s38, s21, 16
    v_lshl_add_u32 v19, v9, 4, s38          ; Kf + 16 j
    v_lshl_add_u32 v40, v17, 3, v19         ; + 8h
    v_mov_b32 v41, 0
    v_mov_b32 v42, s38
    ds_write_b16 v42, v41 offset:4600
    ''')
    for r in range(12):
        g.i('v_cvt_pk_bf16_f32 v%d, v%d, v%d' % (44 + r, ACC + r, ACC + r))
    for r in range(4):
        g.i('ds_write_b16 v40, v%d offset:%d' % (44 + r, 2 * r))
    for r, delta in zip(range(4, 8), (512, 516, 1016, 1020)):
        g.i('s_movk_i32 s39, %d\nv_mad_u32_u24 v43, v17, s39, v19' % delta)
        g.i('ds_write_b16 v43, v%d offset:%d' % (44 + r, 512 + 4 * (r - 4)))
    g.i('s_movk_i32 s39, 2048\nv_mad_u32_u24 v43, v17, s39, v19')
    g.i('ds_write_b16 v43, v52 offset:2048')
    g.i('s_mov_b32 exec_hi, 0')
    for r in range(9, 12):
        g.i('ds_write_b16 v19, v%d offset:%d' % (44 + r, 2048 + 512 * (r - 8)))
    g.i('s_mov_b32 exec_hi, -1')
    g.label('L_k1C_gather')
    g.i('s_waitcnt lgkmcnt(0)\ns_barrier')
    g.reset_counts() if False else None
    g.i('''
    v_mov_b32 v40, s21                      ; channel byte for the address perm
    s_mov_b32 s40, 0x0c040100
    s_mov_b32 s41, 0x0c040302
    s_mul_i32 s42, s23, %d
    s_add_u32 s42, s42, %d
    v_lshlrev_b32 v6, 4, v3                 ; 16 * chunk
    ''' % (KRB, WS_KR))
    def gather_round(tb, vaddr, soff):
        for e in range(8):
            g.i('v_perm_b32 v%d, v40, v%d, %s' % (96 + e, tb + e // 2, 's40' if e % 2 == 0 else 's41'))
        g.i('v_perm_b32 v104, v40, v%d, s40' % (tb + 4))
        tk = [g.i('ds_read_u16 v%d, v%d' % (108 + e, 96 + e)) for e in range(9)]
        g.wait(tk[-1])
        for p in range(4):
            g.i('v_lshl_or_b32 v%d, v%d, 16, v%d' % (120 + p, 108 + 2 * p + 1, 108 + 2 * p))
            g.i('v_lshl_or_b32 v%d, v%d, 16, v%d' % (124 + p, 108 + 2 * p + 2, 108 + 2 * p + 1))
        g.i('s_add_u32 s43, s42, %d' % soff)
        g.i('buffer_store_dwordx4 v[120:123], %s, s[32:35], s43 offen' % vaddr)
        g.i('buffer_store_dwordx4 v[124:127], %s, s[32:35], s43 offen offset:%d' % (vaddr, 0))
    def gather_round2(tb, vaddr, soff):
        for e in range(8):
            g.i('v_perm_b32 v%d, v40, v%d, %s' % (96 + e, tb + e // 2, 's40' if e % 2 == 0 else 's41'))
        g.i('v_perm_b32 v104, v40, v%d, s40' % (tb + 4))
        tk = [g.i('ds_read_u16 v%d, v%d' % (108 + e, 96 + e)) for e in range(9)]
        g.wait(tk[-1])
        for p in range(4):
            g.i('v_lshl_or_b32 v%d, v%d, 16, v%d' % (120 + p, 108 + 2 * p + 1, 108 + 2 * p))
            g.i('v_lshl_or_b32 v%d, v%d, 16, v%d' % (124 + p, 108 + 2 * p + 2, 108 + 2 * p + 1))
        g.i('s_add_u32 s43, s42, %d\ns_add_u32 s44, s43, %d' % (soff, KRL * 2))
        g.i('buffer_store_dwordx4 v[120:123], %s, s[32:35], s43 offen' % vaddr)
        g.i('buffer_store_dwordx4 v[124:127], %s, s[32:35], s44 offen' % vaddr)
    g.wait(tt[0]); gather_round2(TB, 'v6', 0)
    g.wait(tt[1]); gather_round2(TB + 6, 'v6', 2048)
    g.wait(tt[2])
    g.i('s_cmp_eq_u32 s22, 0\ns_cbranch_scc1 L_k1C_end')
    g.i('v_cmp_gt_u32 vcc, 16, v1\ns_and_saveexec_b64 s[46:47], vcc\ns_cbranch_execz L_k1C_end')
    g.i('v_lshlrev_b32 v7, 4, v1')
    gather_round2(TB + 12, 'v7', 4096)
    g.label('L_k1C_end')
    g.i('s_endpgm')

def k1(g):
    g.raw(kstart('k1_prep_kernel'))
    g.i('''
    s_cmp_ge_u32 s2, %d
    s_cbranch_scc1 L_k1_exit
    s_cmp_lt_u32 s2, %d
    s_cbranch_scc1 L_k1_C
    s_cmp_lt_u32 s2, %d
    s_cbranch_scc1 L_k1_A
    ''' % (K1_GRID, K1_NC, K1_NC + K1_NA))
    role_B(g)
    g.label('L_k1_A')
    role_A(g)
    g.label('L_k1_C')
    role_C(g)
    g.label('L_k1_exit')
    g.i('s_endpgm')
    tbl = gather_table()
    g.raw('.p2align 4\n.type K1_TBL,@object\nK1_TBL:')
    for i in range(0, len(tbl), 16):
        g.raw('.short ' + ','.join(str(x) for x in tbl[i:i + 16]))
    g.raw('.size K1_TBL, %d' % (2 * len(tbl)))
```

```python
L = 2048; D = 576; N = 128; F = 4608
XBYTES = L * D * 2
WS_MODP = 0
WS_MODF = 57344
WS_XT = 65536
WS_XNT = WS_XT + XBYTES
KRL = 2176
KRB = 2 * KRL * 2
KC0 = 2080
WS_KR = WS_XNT + XBYTES
WS_X1T = WS_KR + D * KRB
WS_X1R = WS_X1T + XBYTES
WS_ACT = WS_X1R + XBYTES
WS_PART = WS_ACT + L * F * 2
WS_END = WS_PART + 4 * XBYTES
KA = dict(x=0, are=8, aim=16, bre=24, bim=32, cre=40, cim=48, ldt=56, dskip=64, bx=72, wg=80, wu=88, wd=96, c=104, wmod=112, out=120, dbg=128, ws=136)
if __name__ == '__main__':
    for k, v in list(globals().items()):
        if k.startswith('WS_'): print(k, v, hex(v))
```

```python
import sys, os, importlib
sys.path.insert(0, 'dev')
from glib import *
from layout import *
import k1

HDR = open('adaLN_cond__ssm_conv_s4__geglu_ffn__prompt.s.ref').read().split('; Override')[0]

def build(kernels, out):
    launches, bodies, descs = [], [], []
    for (name, grid, lds, fn, vg, acc) in kernels:
        launches.append('; @launch kernel=%s grid=(%d,1,1) block=(256,1,1) lds=%d' % (name, grid, lds))
        g = G(); fn(g)
        bodies.append(g.finalize())
        descs.append(kdesc(name, vg, acc))
        print('%s: %d items, %d nops' % (name, len(g.items), g.nnop), file=sys.stderr)
    s = HDR + '\n'.join(launches) + '\n.amdgcn_target "amdgcn-amd-amdhsa--gfx950"\n.text\n' + '\n'.join(bodies) + 'L_text_pf_end:\n'
    s += '.section .rodata,"a"\n.p2align 6\n' + '.p2align 6\n'.join(descs)
    open(out, 'w').write(s)
    print('wrote', out, len(s), 'bytes', file=sys.stderr)

def kernels():
    ks = [('k1_prep_kernel', k1.K1_GRID, k1.K1_LDS, k1.k1, 224, 224)]
    for modname in os.environ.get('KLIST', 'k2,k3,k4').split(','):
        try:
            m = importlib.import_module(modname)
        except ModuleNotFoundError:
            continue
        ks.append(m.KERNEL)
    return ks

if __name__ == '__main__':
    out = sys.argv[1] if len(sys.argv) > 1 else 'full.s'
    build(kernels(), out)
```

```python
import re

REG_RE = re.compile(r'^(-|abs\()?([vsa])(\d+)\)?$')
RNG_RE = re.compile(r'^(-|abs\()?([vsa])\[(\d+):(\d+)\]\)?$')


def regs_of(op):
    op = op.strip()
    m = REG_RE.match(op)
    if m:
        return {(m.group(2), int(m.group(3)))}
    m = RNG_RE.match(op)
    if m:
        return {(m.group(2), i) for i in range(int(m.group(3)), int(m.group(4)) + 1)}
    if op == 'vcc':
        return {('s', 'vcc')}
    if op == 'exec':
        return {('s', 'exec')}
    if op == 'm0':
        return {('s', 'm0')}
    return set()


def split_ops(s):
    out, depth, cur = [], 0, ''
    for ch in s:
        if ch in '[(':
            depth += 1
        if ch in '])':
            depth -= 1
        if ch == ',' and depth == 0:
            out.append(cur.strip())
            cur = ''
        else:
            cur += ch
    if cur.strip():
        out.append(cur.strip())
    return out


TRANS = ('v_exp_f32', 'v_log_f32', 'v_rcp_f32', 'v_rsq_f32', 'v_sqrt_f32', 'v_sin_f32', 'v_cos_f32')


class Ins:
    __slots__ = ('text', 'mn', 'kind', 'dst', 'src', 'passes', 'trans', 'dpp', 'wide_store', 'lds_dma', 'nstates')

    def __init__(self, text):
        self.text = text
        t = text.split(';')[0].strip()
        parts = t.split(None, 1)
        self.mn = mn = parts[0]
        rest = parts[1] if len(parts) > 1 else ''
        ops = split_ops(rest)
        mods = ''
        if ops:
            last = ops[-1].split()
            if len(last) > 1:
                ops[-1] = last[0]
                mods = ' '.join(last[1:])
        self.dst, self.src = set(), set()
        self.passes = 0
        self.trans = False
        self.dpp = False
        self.wide_store = False
        self.lds_dma = False
        self.nstates = 1
        R = [regs_of(o) for o in ops]
        if mn.startswith('v_mfma'):
            self.kind = 'mfma'
            self.dst = R[0]
            self.src = R[1] | R[2] | R[3]
            self.passes = 8 if '32x32' in mn else 4
            if 'x2_f32' in mn or 'x1_' in mn:
                self.passes = 16
        elif mn.startswith('v_'):
            self.kind = 'valu'
            base = mn.replace('_e32', '').replace('_e64', '').replace('_dpp', '').replace('_sdwa', '')
            self.trans = base in TRANS
            self.dpp = ('row_' in mods or 'quad_perm' in mods or 'wave_' in mods or mn.endswith('_dpp'))
            if base.startswith('v_cmp'):
                self.dst = R[0]
                self.src = set().union(*R[1:])
                if base.startswith('v_cmpx'):
                    self.dst = self.dst | {('s', 'exec')}
            elif base.startswith('v_permlane') and 'swap' in base:
                self.dst = R[0] | R[1]
                self.src = R[0] | R[1]
            elif base in ('v_add_co_u32', 'v_sub_co_u32', 'v_addc_co_u32', 'v_subb_co_u32'):
                self.dst = R[0] | R[1]
                self.src = set().union(*R[2:])
            elif base in ('v_fmac_f32', 'v_dot2c_f32_bf16', 'v_writelane_b32'):
                self.dst = R[0]
                self.src = set().union(*R)
            else:
                self.dst = R[0]
                self.src = set().union(*R[1:]) if len(R) > 1 else set()
                if base.startswith('v_cndmask') and len(R) == 3:
                    self.src |= {('s', 'vcc')}
        elif mn.startswith('ds_'):
            self.kind = 'ds'
            if mn.startswith('ds_read') or mn.startswith('ds_bpermute') or mn.startswith('ds_swizzle') or mn.startswith('ds_permute'):
                self.dst = R[0]
                self.src = set().union(*R[1:])
            else:
                self.src = set().union(*R)
        elif mn.startswith('buffer_') or mn.startswith('global_'):
            self.kind = 'vmem'
            allm = mods + ' ' + rest
            if mn in ('buffer_wbl2', 'buffer_inv'):
                pass
            elif mn.startswith('global_load_lds') or (mn.startswith('buffer_load') and re.search(r'\blds\b', allm)):
                self.lds_dma = True
                self.src = set().union(*R) | {('s', 'm0')}
            elif '_load' in mn:
                self.dst = R[0]
                self.src = set().union(*R[1:])
            elif '_store' in mn:
                self.src = set().union(*R)
                self.wide_store = mn.endswith('x4') or mn.endswith('x3')
                if self.wide_store:
                    self.dst = set()
            elif '_atomic' in mn:
                self.src = set().union(*R)
                if 'sc0' in allm:
                    self.dst = R[0]
        elif mn == 's_nop':
            self.kind = 'nop'
            self.nstates = int(ops[0], 0) + 1
        elif mn in ('s_waitcnt', 's_barrier', 's_endpgm', 's_setprio', 's_sleep'):
            self.kind = 'ctl'
        elif mn.startswith('s_cbranch') or mn == 's_branch':
            self.kind = 'br'
        elif mn.startswith('s_load') or mn.startswith('s_buffer_load') or mn in ('s_memtime', 's_memrealtime'):
            self.kind = 'smem'
            self.dst = R[0]
            self.src = set().union(*R[1:]) if len(R) > 1 else set()
        elif mn.startswith('s_'):
            self.kind = 'salu'
            if mn.startswith('s_cmp') or mn.startswith('s_bitcmp'):
                self.src = set().union(*R)
            elif 'saveexec' in mn:
                self.dst = R[0] | {('s', 'exec')}
                self.src = set().union(*R[1:]) | {('s', 'exec')}
            else:
                self.dst = R[0] if R else set()
                self.src = set().union(*R[1:]) if len(R) > 1 else set()
        else:
            raise ValueError('unknown instruction ' + text)

    def store_data(self):
        t = self.text.split(';')[0].strip()
        ops = split_ops(t.split(None, 1)[1])
        if self.mn.startswith('buffer_'):
            return regs_of(ops[0])
        return regs_of(ops[1].split()[0])


def need_states(p, c):
    n = 0
    vdst = {r for r in p.dst if r[0] in 'va'}
    sdst = {r for r in p.dst if r[0] == 's'}
    if p.kind == 'valu':
        if c.kind == 'mfma' and vdst & c.src:
            n = max(n, 2)
        if c.kind == 'mfma' and ('s', 'exec') in sdst:
            n = max(n, 4)
        if c.kind == 'valu':
            if c.dpp and vdst & c.src:
                n = max(n, 2)
            if c.dpp and ('s', 'exec') in sdst:
                n = max(n, 5)
            if c.mn.startswith('v_permlane') and vdst & c.src:
                n = max(n, 2)
            if (c.mn.startswith('v_readlane') or c.mn.startswith('v_readfirstlane')) and vdst & c.src:
                n = max(n, 1)
            if (c.mn.startswith('v_readlane') or c.mn.startswith('v_writelane')) and sdst & c.src:
                n = max(n, 4)
            if sdst & c.src:
                n = max(n, 2)
            if p.trans and not c.trans and vdst & c.src:
                n = max(n, 1)
            if p.trans and c.trans and vdst & c.src:
                n = max(n, 1)
        if c.kind == 'vmem' and sdst & c.src:
            n = max(n, 5)
        if c.kind in ('salu', 'br') and sdst & c.src:
            n = max(n, 3)
        if c.kind == 'br' and ('s', 'vcc') in sdst and 'vcc' in c.mn:
            n = max(n, 5)
        if c.kind == 'br' and ('s', 'exec') in sdst and 'exec' in c.mn:
            n = max(n, 5)
    if p.kind == 'mfma':
        tbl = {4: (8, 6), 8: (12, 10), 16: (20, 18)}[p.passes]
        if c.kind == 'mfma':
            t = c.text.split(';')[0]
            ops = split_ops(t.split(None, 1)[1])
            ab = regs_of(ops[1]) | regs_of(ops[2])
            cc = regs_of(ops[3].split()[0])
            if vdst & ab:
                n = max(n, tbl[0])
            if vdst & cc and not (cc == vdst and c.passes == p.passes):
                n = max(n, tbl[1])
            if vdst & c.dst and not (cc == vdst and c.dst == vdst) and not (vdst & cc):
                n = max(n, tbl[1])
        elif c.kind in ('valu', 'ds', 'vmem'):
            if vdst & (c.src | c.dst):
                n = max(n, tbl[0])
        if c.kind == 'valu':
            t = p.text.split(';')[0]
            ops = split_ops(t.split(None, 1)[1])
            cc = regs_of(ops[3].split()[0])
            if cc & c.dst:
                n = max(n, {4: 3, 8: 7, 16: 15}[p.passes])
    if p.kind == 'salu' and ('s', 'm0') in sdst and c.lds_dma:
        n = max(n, 1)
    if p.kind == 'vmem' and p.wide_store:
        if c.kind == 'valu' and p.store_data() & c.dst:
            n = max(n, 2)
        elif p.store_data() & c.dst:
            n = max(n, 1)
    return n


class Tok:
    __slots__ = ('cls', 'idx')

    def __init__(self, cls, idx):
        self.cls, self.idx = cls, idx


class G:
    def __init__(self):
        self.items = []
        self.nvm = 0
        self.nlg = 0
        self.vm_done = 0
        self.lg_done = 0
        self.smem_out = False

    def raw(self, s):
        self.items.append(s)

    def label(self, name):
        self.items.append(name + ':')

    def i(self, text):
        tok = None
        for line in text.strip().split('\n'):
            line = line.strip()
            if not line or line.startswith(';'):
                continue
            if line.endswith(':'):
                self.items.append(line)
                continue
            ins = Ins(line)
            self.items.append(ins)
            if ins.kind == 'vmem':
                self.nvm += 1
                tok = Tok('vm', self.nvm)
            elif ins.kind == 'ds':
                self.nlg += 1
                tok = Tok('lg', self.nlg)
            elif ins.kind == 'smem':
                self.smem_out = True
            elif ins.mn == 's_waitcnt':
                m = re.search(r'vmcnt\((\d+)\)', line)
                if m:
                    self.vm_done = max(self.vm_done, self.nvm - int(m.group(1)))
                m = re.search(r'lgkmcnt\((\d+)\)', line)
                if m:
                    if int(m.group(1)) == 0:
                        self.smem_out = False
                        self.lg_done = self.nlg
                    elif not self.smem_out:
                        self.lg_done = max(self.lg_done, self.nlg - int(m.group(1)))
        return tok

    def wait(self, *toks):
        vm = max([t.idx for t in toks if t is not None and t.cls == 'vm'], default=0)
        lg = max([t.idx for t in toks if t is not None and t.cls == 'lg'], default=0)
        s = []
        if vm > self.vm_done:
            s.append('vmcnt(%d)' % min(63, self.nvm - vm))
        if lg > self.lg_done:
            n = 0 if self.smem_out else min(15, self.nlg - lg)
            s.append('lgkmcnt(%d)' % n)
        if s:
            self.i('s_waitcnt ' + ' '.join(s))

    def wait_all(self):
        self.i('s_waitcnt vmcnt(0) lgkmcnt(0)')

    def wait_lg0(self):
        self.i('s_waitcnt lgkmcnt(0)')

    def reset_counts(self):
        self.vm_done = self.nvm
        self.lg_done = self.nlg

    def finalize(self, window=24):
        out = []
        hist = []
        nnop = 0
        for it in self.items:
            if isinstance(it, str):
                out.append(it)
                continue
            need = 0
            dist = 0
            for p in reversed(hist):
                n = need_states(p, it)
                if n > dist:
                    need = max(need, n - dist)
                dist += p.nstates
                if dist >= window:
                    break
            while need > 0:
                k = min(need, 16)
                nop = Ins('s_nop %d' % (k - 1))
                out.append(nop)
                hist.append(nop)
                need -= k
                nnop += 1
            out.append(it)
            hist.append(it)
            if len(hist) > 64:
                hist = hist[-48:]
        self.nnop = nnop
        lines = []
        for it in out:
            if isinstance(it, str):
                lines.append(it)
            else:
                lines.append('\t' + it.text)
        return '\n'.join(lines) + '\n'


def vr(a, n=1):
    return 'v%d' % a if n == 1 else 'v[%d:%d]' % (a, a + n - 1)


def ar(a, n=1):
    return 'a%d' % a if n == 1 else 'a[%d:%d]' % (a, a + n - 1)


def sr(a, n=1):
    return 's%d' % a if n == 1 else 's[%d:%d]' % (a, a + n - 1)


def kstart(name):
    return '.globl %s\n.p2align 8\n.type %s,@function\n%s:' % (name, name, name)


def kdesc(name, vgpr, accum, sgpr=102):
    return ('.amdhsa_kernel %s\n  .amdhsa_next_free_vgpr %d\n  .amdhsa_next_free_sgpr %d\n  .amdhsa_accum_offset %d\n'
            '  .amdhsa_group_segment_fixed_size 0\n  .amdhsa_kernarg_size 144\n  .amdhsa_user_sgpr_count 2\n'
            '  .amdhsa_user_sgpr_kernarg_segment_ptr 1\n  .amdhsa_system_sgpr_workgroup_id_x 1\n'
            '  .amdhsa_float_denorm_mode_32 3\n.end_amdhsa_kernel\n') % (name, vgpr, sgpr, accum)


import os
STAMPS = os.environ.get('STAMPS', '') != ''

def stamp(g, k):
    if not STAMPS: return
    g.i('s_memtime s[94:95]\ns_memrealtime s[92:93]\ns_waitcnt lgkmcnt(0)\ns_mov_b32 s%d, s94\ns_mov_b32 s%d, s92' % (70 + 2 * k, 71 + 2 * k))

def stamp_rt(g, k):
    pass

def stamp_flush(g, n, wg, vtmp=250):
    if not STAMPS: return
    n = min(n, 11)
    lab = 'L_stamp_%d' % len(g.items)
    g.i('s_cmp_lg_u32 s2, %d\ns_cbranch_scc1 %s' % (wg, lab))
    g.i('s_load_dwordx2 s[68:69], s[0:1], 128\ns_waitcnt lgkmcnt(0)')
    g.i('v_mov_b32 v%d, 0' % vtmp)
    g.i('v_cmp_eq_u32 vcc, 0, v0\ns_and_saveexec_b64 s[66:67], vcc\ns_cbranch_execz %s_r' % lab)
    for k in range(2 * n):
        g.i('v_mov_b32 v%d, s%d\nglobal_store_dword v%d, v%d, s[68:69] offset:%d' % (vtmp + 1, 70 + k, vtmp, vtmp + 1, 4 * k))
    g.label(lab + '_r')
    g.i('s_mov_b64 exec, s[66:67]')
    g.label(lab)


TL = os.environ.get('TL', '') != ''
TL_BASE = 48 << 20
def tl_entry(g):
    if not TL: return
    g.i('s_memrealtime s[96:97]')
def tl_exit(g, kidx, vtmp=248):
    if not TL: return
    lab = 'L_tl_%d' % len(g.items)
    g.i('s_waitcnt vmcnt(0) lgkmcnt(0)')
    g.i('s_mov_b64 exec, -1')
    g.i('s_memrealtime s[98:99]\ns_load_dwordx2 s[100:101], s[0:1], 136\ns_waitcnt lgkmcnt(0)')
    g.i('v_lshrrev_b32 v%d, 6, v0\nv_mov_b32 v%d, s96\nv_mov_b32 v%d, s98' % (vtmp, vtmp + 2, vtmp + 3))
    g.i('s_lshl_b32 s96, s2, 2\nv_add_u32 v%d, s96, v%d\nv_lshlrev_b32 v%d, 3, v%d' % (vtmp, vtmp, vtmp, vtmp))
    g.i('v_add_u32 v%d, %d, v%d' % (vtmp, TL_BASE + kidx * 65536, vtmp))
    g.i('global_store_dwordx2 v%d, v[%d:%d], s[100:101]' % (vtmp, vtmp + 2, vtmp + 3))


HT = os.environ.get('HT', '') != ''
HT_BASE = 47 << 20
def ht_start(g, kidx, vt):
    if not HT: return
    lab = 'L_ht_%d_%d' % (kidx, len(g.items))
    g.i('s_cmp_lg_u32 s2, 0\ns_cbranch_scc1 %s' % lab)
    g.i('s_memrealtime s[96:97]\ns_load_dwordx2 s[100:101], s[0:1], 136\ns_waitcnt lgkmcnt(0)')
    g.i('v_mov_b32 v%d, %d\nv_mov_b32 v%d, s96\nglobal_store_dword v%d, v%d, s[100:101]' % (vt, HT_BASE + 4 * kidx, vt + 1, vt, vt + 1))
    g.i('s_waitcnt vmcnt(0)')
    g.label(lab)
def ht_final(g, wg, nk, own_index, vt):
    if not HT: return
    lab = 'L_htf_%d' % len(g.items)
    g.i('s_cmp_lg_u32 s2, %d\ns_cbranch_scc1 %s' % (wg, lab))
    g.i('s_waitcnt vmcnt(0)\ns_mov_b64 exec, -1')
    g.i('s_memrealtime s[96:97]\ns_load_dwordx2 s[100:101], s[0:1], 136\ns_load_dwordx2 s[98:99], s[0:1], 128\ns_waitcnt lgkmcnt(0)')
    g.i('s_sub_u32 s98, s98, %d\ns_subb_u32 s99, s99, 0' % (512 * own_index))
    g.i('v_and_b32 v%d, 7, v0\nv_lshlrev_b32 v%d, 2, v%d\nv_add_u32 v%d, %d, v%d' % (vt, vt, vt, vt + 1, HT_BASE, vt))
    g.i('global_load_dword v%d, v%d, s[100:101] sc1\ns_waitcnt vmcnt(0)' % (vt + 2, vt + 1))
    g.i('v_mov_b32 v%d, s96\nv_cmp_eq_u32 vcc, %d, v0\ns_nop 1\nv_cndmask_b32 v%d, v%d, v%d, vcc' % (vt + 3, nk, vt + 2, vt + 2, vt + 3))
    g.i('v_cmp_gt_u32 vcc, 8, v0\ns_and_saveexec_b64 s[96:97], vcc\ns_cbranch_execz %s' % lab)
    g.i('global_store_dword v%d, v%d, s[98:99]' % (vt, vt + 2))
    g.label(lab)
```

```python
from glib import *
from layout import *
import numpy as np, os

LOG2E = 0x3fb8aa3b
INV2PI = 0x3e22f983

def f2u(x): return int(np.float32(x).view(np.uint32))

K1_NC, K1_NA, K1_NB = 288, 64, 108
K1_GRID = K1_NC + K1_NA + K1_NB
K1_LDS = 75776

def bf16_round_int(l):
    u = np.float32(l).view(np.uint32)
    r = ((int(u) + 0x7FFF + ((int(u) >> 16) & 1)) >> 16) << 16
    return int(np.uint32(r).view(np.float32))

def gather_table():
    t = []
    for i in range(8 * 274):
        l = KC0 - i
        t.append(2 * bf16_round_int(l) if 0 <= l <= 2047 else 4600)
    return t

def ws_srd(g, s, ptr):
    g.i('s_mov_b32 %s, %s\ns_mov_b32 %s, %s\ns_mov_b32 %s, %d\ns_mov_b32 %s, 0x20000' % (sr(s), sr(ptr), sr(s + 1), sr(ptr + 1), sr(s + 2), WS_END, sr(s + 3)))

def srd(g, s, ptr, nbytes):
    g.i('s_mov_b32 %s, %s\ns_mov_b32 %s, %s\ns_mov_b32 %s, %d\ns_mov_b32 %s, 0x20000' % (sr(s), sr(ptr), sr(s + 1), sr(ptr + 1), sr(s + 2), nbytes, sr(s + 3)))

def rb_inplace(g, v, tmp=None):
    g.i('v_cvt_pk_bf16_f32 %s, %s, %s' % (vr(v), vr(v), vr(v)))
    g.i('v_lshlrev_b32 %s, 16, %s' % (vr(v), vr(v)))

def role_B(g):
    g.i('''
    s_load_dwordx2 s[4:5], s[0:1], %d
    s_load_dwordx2 s[6:7], s[0:1], %d
    s_load_dwordx2 s[8:9], s[0:1], %d
    s_sub_u32 s3, s2, %d
    s_mul_i32 s20, s3, 2428
    s_lshr_b32 s20, s20, 16          ; kq
    s_mul_i32 s21, s20, 27
    s_sub_u32 s21, s3, s21           ; cc
    v_lshrrev_b32 v1, 4, v0          ; rg
    v_and_b32 v2, 15, v0             ; cl
    s_mul_i32 s22, s20, 144
    v_add_u32 v3, s22, v1            ; row0
    s_movk_i32 s23, 6912
    v_mul_lo_u32 v4, v3, s23
    s_lshl_b32 s24, s21, 8
    v_lshl_add_u32 v5, v2, 4, s24
    v_add_u32 v4, v4, v5             ; w_mod byte offset
    v_lshlrev_b32 v3, 1, v3          ; c byte offset
    s_waitcnt lgkmcnt(0)
    ''' % (KA['c'], KA['wmod'], KA['ws'], K1_NC + K1_NA))
    srd(g, 12, 4, 1152)
    srd(g, 16, 6, 576 * 6912)
    ws_srd(g, 24, 8)
    ct, wt = [], []
    for i in range(9):
        ct.append(g.i('buffer_load_ushort v%d, v3, s[12:15], 0 offen offset:%d' % (10 + i, 32 * i)))
    for i in range(9):
        g.i('s_mov_b32 s30, %d' % (110592 * i))
        wt.append(g.i('buffer_load_dwordx4 %s, v4, s[16:19], s30 offen' % vr(24 + 4 * i, 4)))
    for j in range(8): g.i('v_mov_b32 v%d, 0' % (64 + j))
    g.i('s_mov_b32 s31, 0x%x' % (LOG2E | 0x80000000))
    g.wait(ct[-1])
    for i in range(9):
        c = 10 + i
        g.i('v_lshlrev_b32 v%d, 16, v%d' % (c, c))
    for i in range(9): g.i('v_mul_f32 v%d, s31, v%d' % (72 + i, 10 + i))
    for i in range(9): g.i('v_exp_f32 v%d, v%d' % (72 + i, 72 + i))
    for i in range(9): g.i('v_add_f32 v%d, 1.0, v%d' % (72 + i, 72 + i))
    for i in range(9): g.i('v_rcp_f32 v%d, v%d' % (72 + i, 72 + i))
    for i in range(9): g.i('v_mul_f32 v%d, v%d, v%d' % (10 + i, 10 + i, 72 + i))
    for i in range(9): g.i('v_cvt_pk_bf16_f32 v%d, v%d, v%d' % (10 + i, 10 + i, 10 + i))
    for i in range(9): g.i('v_lshlrev_b32 v%d, 16, v%d' % (10 + i, 10 + i))
    g.i('s_mov_b32 s32, 0xffff0000')
    for i in range(9):
        g.wait(wt[i])
        for j in range(4):
            w = 24 + 4 * i + j
            g.i('v_lshlrev_b32 v82, 16, v%d\nv_and_b32 v83, s32, v%d' % (w, w))
            g.i('v_fmac_f32 v%d, v82, v%d\nv_fmac_f32 v%d, v83, v%d' % (64 + 2 * j, 10 + i, 65 + 2 * j, 10 + i))
    g.i('v_lshlrev_b32 v6, 9, v1\nv_lshl_add_u32 v6, v2, 5, v6')
    g.i('ds_write_b128 v6, v[64:67]\nds_write_b128 v6, v[68:71] offset:16')
    g.i('s_waitcnt lgkmcnt(0)\ns_barrier')
    g.i('v_cmp_gt_u32 vcc, 128, v0\ns_and_saveexec_b64 s[34:35], vcc\ns_cbranch_execz L_k1B_end')
    g.i('v_lshlrev_b32 v7, 2, v0')
    toks = [g.i('ds_read_b32 v%d, v7 offset:%d' % (24 + r, 512 * r)) for r in range(16)]
    g.wait(toks[-1])
    for st in (8, 4, 2, 1):
        for r in range(st): g.i('v_add_f32 v%d, v%d, v%d' % (24 + r, 24 + r, 24 + r + st))
    g.i('''
    s_mul_i32 s33, s20, 13824
    s_lshl_b32 s36, s21, 9
    s_add_u32 s33, s33, s36
    buffer_store_dword v24, v7, s[24:27], s33 offen
    L_k1B_end:
    ''')
    tl_exit(g, 0, 200)
    g.i('s_endpgm')

def role_A(g):
    RS = 1184
    RAW, FP = 16, 56
    g.i('''
    s_load_dwordx2 s[4:5], s[0:1], %d
    s_load_dwordx2 s[8:9], s[0:1], %d
    s_sub_u32 s3, s2, %d              ; tb
    v_lshrrev_b32 v1, 3, v0           ; row
    v_and_b32 v2, 7, v0               ; sub
    s_lshl_b32 s20, s3, 5
    v_add_u32 v3, s20, v1
    s_movk_i32 s21, 1152
    v_mul_lo_u32 v3, v3, s21
    v_lshl_add_u32 v3, v2, 4, v3      ; global byte offset
    s_movk_i32 s21, %d
    v_mul_lo_u32 v4, v1, s21
    v_lshl_add_u32 v4, v2, 4, v4      ; LDS write address
    s_waitcnt lgkmcnt(0)
    ''' % (KA['x'], KA['ws'], K1_NC, RS))
    srd(g, 12, 4, XBYTES)
    ws_srd(g, 24, 8)
    stamp(g, 0)
    lt = [g.i('buffer_load_dwordx4 %s, v3, s[12:15], 0 offen offset:%d' % (vr(RAW + 4 * i, 4), 128 * i)) for i in range(9)]
    g.i('s_mov_b32 s32, 0xffff0000\nv_mov_b32 v6, 0\nv_mov_b32 v7, 0')
    for i in range(9):
        g.wait(lt[i])
        g.i('ds_write_b128 v4, %s offset:%d' % (vr(RAW + 4 * i, 4), 128 * i))
        for j in range(4):
            w = RAW + 4 * i + j; f = FP + 8 * i + 2 * j
            g.i('v_lshlrev_b32 v%d, 16, v%d\nv_and_b32 v%d, s32, v%d' % (f, w, f + 1, w))
        for j in range(4):
            f = FP + 8 * i + 2 * j
            g.i('v_pk_add_f32 v[6:7], v[6:7], %s' % vr(f, 2))
    def red8(v):
        g.i('v_add_f32_dpp %s, %s, %s quad_perm:[1,0,3,2] row_mask:0xf bank_mask:0xf' % (v, v, v))
        g.i('v_add_f32_dpp %s, %s, %s quad_perm:[2,3,0,1] row_mask:0xf bank_mask:0xf' % (v, v, v))
        g.i('v_add_f32_dpp %s, %s, %s row_half_mirror row_mask:0xf bank_mask:0xf' % (v, v, v))
    stamp(g, 1)
    g.i('v_add_f32 v6, v6, v7')
    red8('v6')
    g.i('s_mov_b32 s33, 0x%x' % f2u(1.0 / 576))
    g.i('v_mul_f32 v8, s33, v6        ; mean')
    g.i('v_sub_f32 v10, 0, v8\nv_sub_f32 v11, 0, v8\nv_mov_b32 v6, 0\nv_mov_b32 v7, 0')
    for i in range(36):
        f = FP + 2 * i
        t = 128 + 2 * (i % 4)
        g.i('v_pk_add_f32 %s, %s, v[10:11]' % (vr(t, 2), vr(f, 2)))
        g.i('v_pk_fma_f32 v[6:7], %s, %s, v[6:7]' % (vr(t, 2), vr(t, 2)))
    g.i('v_add_f32 v6, v6, v7')
    red8('v6')
    g.i('v_mul_f32 v6, s33, v6        ; var')
    rb_inplace(g, 6)
    g.i('v_add_f32 v6, 0x%x, v6' % f2u(1e-5))
    rb_inplace(g, 6)
    g.i('v_sqrt_f32 v6, v6')
    rb_inplace(g, 6)
    g.i('v_rcp_f32 v12, v6')
    rb_inplace(g, 8)
    g.i('v_sub_f32 v10, 0, v8\nv_sub_f32 v11, 0, v8\nv_mov_b32 v13, v12')
    for i in range(36):
        f = FP + 2 * i
        g.i('v_pk_add_f32 %s, %s, v[10:11]' % (vr(f, 2), vr(f, 2)))
    for i in range(36):
        f = FP + 2 * i
        g.i('v_cvt_pk_bf16_f32 v%d, v%d, v%d' % (RAW + i, f, f + 1))
    for i in range(36):
        f = FP + 2 * i; w = RAW + i
        g.i('v_lshlrev_b32 v%d, 16, v%d\nv_and_b32 v%d, s32, v%d' % (f, w, f + 1, w))
    for i in range(36):
        f = FP + 2 * i
        g.i('v_pk_mul_f32 %s, %s, v[12:13]' % (vr(f, 2), vr(f, 2)))
    for i in range(36):
        f = FP + 2 * i
        g.i('v_cvt_pk_bf16_f32 v%d, v%d, v%d' % (RAW + i, f, f + 1))
        if i % 4 == 3:
            g.i('ds_write_b128 v4, %s offset:%d' % (vr(RAW + i - 3, 4), 37888 + 128 * (i // 4)))
    stamp(g, 2)
    g.i('''
    v_and_b32 v1, 63, v0
    v_lshrrev_b32 v2, 6, v0           ; wave
    v_and_b32 v3, 15, v1              ; i
    v_lshrrev_b32 v5, 4, v1           ; q
    v_lshrrev_b32 v6, 2, v3
    v_lshl_add_u32 v6, v5, 3, v6      ; row = 8q + (i>>2)
    s_movk_i32 s21, %d
    v_mul_lo_u32 v6, v6, s21
    v_and_b32 v7, 3, v3
    v_lshl_add_u32 v6, v7, 3, v6
    v_lshl_add_u32 v6, v2, 5, v6      ; + wave*32 bytes (d tile = wave + 4k)
    v_lshlrev_b32 v7, 6, v3
    v_lshl_add_u32 v7, v5, 4, v7
    v_lshl_add_u32 v7, v2, 10, v7     ; store offset: wave*1024 + i*64 + q*16
    s_mul_i32 s22, s3, 36864
    s_waitcnt lgkmcnt(0)
    s_barrier
    ''' % RS)
    stamp(g, 3)
    for arr, (lo, wo) in enumerate(((0, WS_XT), (37888, WS_XNT))):
        toks = []
        for k in range(9):
            r = 16 + 4 * k + 40 * arr
            g.i('ds_read_b64_tr_b16 %s, v6 offset:%d' % (vr(r, 2), lo + 128 * k))
            toks.append(g.i('ds_read_b64_tr_b16 %s, v6 offset:%d' % (vr(r + 2, 2), lo + 128 * k + 4 * RS)))
        for k in range(9):
            r = 16 + 4 * k + 40 * arr
            g.i('s_add_u32 s23, s22, %d' % (wo + 4096 * k))
            g.wait(toks[k])
            g.i('buffer_store_dwordx4 %s, v7, s[24:27], s23 offen' % vr(r, 4))
    stamp(g, 4)
    stamp_flush(g, 5, int(os.environ.get('K1A_WG', '-1')) & 0xffff, 204)
    tl_exit(g, 0, 200)
    g.i('s_endpgm')

def role_C(g):
    UOFF = [4608, 34176]; VOFF_REL = 24 * 528; RS = 528
    g.i('''
    s_load_dwordx4 s[4:7], s[0:1], %d       ; are, aim
    s_load_dwordx4 s[8:11], s[0:1], %d      ; bre, bim
    s_load_dwordx4 s[12:15], s[0:1], %d     ; cre, cim
    s_load_dwordx2 s[16:17], s[0:1], %d     ; log_dt
    s_load_dwordx2 s[18:19], s[0:1], %d     ; ws
    v_lshrrev_b32 v2, 6, v0
    v_and_b32 v1, 63, v0                    ; lane
    s_nop 0
    v_readfirstlane_b32 s20, v2             ; wave
    s_nop 3
    s_lshr_b32 s21, s20, 1                  ; channel in WG
    s_and_b32 s22, s20, 1                   ; mode half
    s_lshl_b32 s23, s2, 1
    s_add_u32 s23, s23, s21                 ; d
    s_lshl_b32 s24, s22, 6
    v_add_u32 v3, s24, v1                   ; n (also gather chunk index within the round)
    s_lshl_b32 s25, s23, 8
    v_lshl_add_u32 v4, v3, 1, s25           ; byte offset in [576][128] bf16
    s_lshl_b32 s26, s23, 1
    v_mov_b32 v5, s26
    s_getpc_b64 s[28:29]
    L_k1C_pc:
    s_add_u32 s28, s28, K1_TBL-L_k1C_pc
    s_addc_u32 s29, s29, 0
    s_waitcnt lgkmcnt(0)
    ''' % (KA['are'], KA['bre'], KA['cre'], KA['ldt'], KA['ws']))
    stamp(g, 0)
    t = []
    for k, b in enumerate((4, 6, 8, 10, 12, 14)):
        t.append(g.i('global_load_ushort v%d, v4, %s' % (10 + k, sr(b, 2))))
    t.append(g.i('global_load_ushort v16, v5, s[16:17]'))
    g.i('v_lshlrev_b32 v6, 4, v3\nv_lshlrev_b32 v7, 4, v1\nv_min_u32 v7, 256, v7')
    TB = 200
    tt = []
    tt.append(g.i('global_load_dwordx4 %s, v6, s[28:29]\nglobal_load_ushort v%d, v6, s[28:29] offset:16' % (vr(TB, 4), TB + 4)))
    tt.append(g.i('global_load_dwordx4 %s, v6, s[28:29] offset:2048\nglobal_load_ushort v%d, v6, s[28:29] offset:2064' % (vr(TB + 6, 4), TB + 10)))
    g.i('v_add_u32 v7, 4096, v7')
    tt.append(g.i('global_load_dwordx4 %s, v7, s[28:29]\nglobal_load_ushort v%d, v7, s[28:29] offset:16' % (vr(TB + 12, 4), TB + 16)))
    ws_srd(g, 32, 18)
    g.i('s_mul_i32 s30, s21, %d\ns_add_u32 s30, s30, %d' % (UOFF[1] - UOFF[0], UOFF[0]))
    g.i('v_lshl_add_u32 v8, v3, 2, s30')
    g.i('s_mov_b32 s31, 0x%x\ns_mov_b32 s36, 0x%x' % (LOG2E, INV2PI))
    g.wait(t[-1])
    stamp(g, 1)
    for k in range(7): g.i('v_lshlrev_b32 v%d, 16, v%d' % (10 + k, 10 + k))
    g.i('v_mul_f32 v16, s31, v16\nv_exp_f32 v16, v16')
    rb_inplace(g, 16)
    g.i('''
    v_mul_f32 v10, v16, v10                 ; zre
    v_mul_f32 v11, v16, v11                 ; zim
    v_mul_f32 v12, v16, v12
    v_mul_f32 v13, v16, v13
    v_mul_f32 v20, v14, v12
    v_mul_f32 v21, v14, v13
    v_fma_f32 v20, -v15, v13, v20
    v_fma_f32 v21, v15, v12, v21
    v_mul_f32 v10, s31, v10
    v_mul_f32 v11, s36, v11
    ''')
    def cexp(dst, scale):
        if scale != 1:
            g.i('v_mul_f32 v17, 0x%x, v10\nv_mul_f32 v18, 0x%x, v11' % (f2u(scale), f2u(scale)))
        else:
            g.i('v_mov_b32 v17, v10\nv_mov_b32 v18, v11')
        g.i('v_rndne_f32 v19, v18\nv_exp_f32 v17, v17\nv_sub_f32 v18, v18, v19')
        g.i('v_cos_f32 v%d, v18\nv_sin_f32 v%d, v18' % (dst, dst + 1))
        g.i('v_mul_f32 v%d, v17, v%d\nv_mul_f32 v%d, v17, v%d' % (dst, dst, dst + 1, dst + 1))
    def cmul(d, a, b):
        g.i('v_mul_f32 v%d, v%d, v%d' % (d, a, b))
        g.i('v_mul_f32 v%d, v%d, v%d' % (d + 1, a, b + 1))
        g.i('v_fma_f32 v%d, -v%d, v%d, v%d' % (d, a + 1, b + 1, d))
        g.i('v_fma_f32 v%d, v%d, v%d, v%d' % (d + 1, a + 1, b, d + 1))
    pk = [0]
    def putU(row, a):
        p = 60 + pk[0] % 8; pk[0] += 1
        g.i('v_cvt_pk_bf16_f32 v%d, v%d, -v%d' % (p, a, a + 1))
        g.i('ds_write_b32 v8, v%d offset:%d' % (p, row * RS))
    def putV(row, a):
        p = 60 + pk[0] % 8; pk[0] += 1
        g.i('v_cvt_pk_bf16_f32 v%d, v%d, v%d' % (p, a, a + 1))
        g.i('ds_write_b32 v8, v%d offset:%d' % (p, VOFF_REL + row * RS))
    Z, W256, W2, W4, W8 = 22, 24, 26, 28, 30
    cexp(Z, 1); cexp(W256, 256.0)
    cmul(W2, Z, Z); cmul(W4, W2, W2); cmul(W8, W4, W4)
    CB = 20
    putU(0, CB)
    x, y = 32, 34
    cur = CB
    for i in range(1, 8):
        nxt = x if cur != x else y
        cmul(nxt, cur, Z); putU(i, nxt); cur = nxt
    A, B = 36, 38
    cmul(A, CB, W256); putU(8, A)
    cur = A
    for i in range(1, 4):
        nxt = x if cur != x else y
        cmul(nxt, cur, W2); putU(8 + i, nxt); cur = nxt
    cmul(B, A, W256); putU(12, B); cmul(x, B, W4); putU(13, x)
    cmul(A, B, W256); putU(14, A); cmul(x, A, W4); putU(15, x)
    cur = A
    for i in range(5):
        nxt = B if cur == A else A
        cmul(nxt, cur, W256); putU(16 + i, nxt); cur = nxt
    g.i('v_mov_b32 v%d, 1.0\nv_mov_b32 v%d, 0' % (x, x + 1))
    putV(0, x); putV(1, W8)
    cur = W8
    for j in range(2, 32):
        nxt = x if cur != x else y
        cmul(nxt, cur, W8); putV(j, nxt); cur = nxt
    stamp(g, 2)
    g.i('s_waitcnt lgkmcnt(0)\ns_barrier')
    stamp(g, 3)
    g.i('s_cmp_lg_u32 s22, 0\ns_cbranch_scc1 L_k1C_gather')
    g.i('''
    v_and_b32 v9, 31, v1                    ; row / column index
    v_lshrrev_b32 v17, 5, v1                ; half
    s_movk_i32 s37, %d
    v_mul_lo_u32 v18, v9, s37
    v_lshl_add_u32 v18, v17, 4, v18
    v_add_u32 v18, s30, v18
    ''' % RS)
    ACC = 64
    fr = []
    for ks in range(16):
        ra = 96 + 8 * (ks % 8)
        if ks >= 8: pass
        g.i('ds_read_b128 %s, v18 offset:%d' % (vr(ra, 4), 32 * ks))
        fr.append(g.i('ds_read_b128 %s, v18 offset:%d' % (vr(ra + 4, 4), VOFF_REL + 32 * ks)))
        if ks >= 7 or ks == 15:
            k0 = ks - 7
            g.wait(fr[k0])
            r0 = 96 + 8 * (k0 % 8)
            g.i('v_mfma_f32_32x32x16_bf16 %s, %s, %s, %s' % (vr(ACC, 16), vr(r0, 4), vr(r0 + 4, 4), '0' if k0 == 0 else vr(ACC, 16)))
    for k0 in range(9, 16):
        g.wait(fr[k0])
        r0 = 96 + 8 * (k0 % 8)
        g.i('v_mfma_f32_32x32x16_bf16 %s, %s, %s, %s' % (vr(ACC, 16), vr(r0, 4), vr(r0 + 4, 4), vr(ACC, 16)))
    g.i('''
    s_lshl_b32 s38, s21, 16
    v_lshl_add_u32 v19, v9, 4, s38          ; Kf + 16 j
    v_lshl_add_u32 v40, v17, 3, v19         ; + 8h
    v_mov_b32 v41, 0
    v_mov_b32 v42, s38
    ds_write_b16 v42, v41 offset:4600
    ''')
    for r in range(12):
        g.i('v_cvt_pk_bf16_f32 v%d, v%d, v%d' % (44 + r, ACC + r, ACC + r))
    for r in range(4):
        g.i('ds_write_b16 v40, v%d offset:%d' % (44 + r, 2 * r))
    for r, delta in zip(range(4, 8), (512, 516, 1016, 1020)):
        g.i('s_movk_i32 s39, %d\nv_mad_u32_u24 v43, v17, s39, v19' % delta)
        g.i('ds_write_b16 v43, v%d offset:%d' % (44 + r, 512 + 4 * (r - 4)))
    g.i('s_movk_i32 s39, 2048\nv_mad_u32_u24 v43, v17, s39, v19')
    g.i('ds_write_b16 v43, v52 offset:2048')
    g.i('s_mov_b32 exec_hi, 0')
    for r in range(9, 12):
        g.i('ds_write_b16 v19, v%d offset:%d' % (44 + r, 2048 + 512 * (r - 8)))
    g.i('s_mov_b32 exec_hi, -1')
    g.label('L_k1C_gather')
    g.i('s_waitcnt lgkmcnt(0)\ns_barrier')
    stamp(g, 4)
    g.i('''
    v_mov_b32 v40, s21                      ; channel byte for the address perm
    s_mov_b32 s40, 0x0c040100
    s_mov_b32 s41, 0x0c040302
    s_mul_i32 s42, s23, %d
    s_add_u32 s42, s42, %d
    v_lshlrev_b32 v6, 4, v3                 ; 16 * chunk
    ''' % (KRB, WS_KR))
    def gather_round(tb, vaddr, soff):
        for e in range(8):
            g.i('v_perm_b32 v%d, v40, v%d, %s' % (96 + e, tb + e // 2, 's40' if e % 2 == 0 else 's41'))
        g.i('v_perm_b32 v104, v40, v%d, s40' % (tb + 4))
        tk = [g.i('ds_read_u16 v%d, v%d' % (108 + e, 96 + e)) for e in range(9)]
        g.wait(tk[-1])
        for p in range(4):
            g.i('v_lshl_or_b32 v%d, v%d, 16, v%d' % (120 + p, 108 + 2 * p + 1, 108 + 2 * p))
            g.i('v_lshl_or_b32 v%d, v%d, 16, v%d' % (124 + p, 108 + 2 * p + 2, 108 + 2 * p + 1))
        g.i('s_add_u32 s43, s42, %d' % soff)
        g.i('buffer_store_dwordx4 v[120:123], %s, s[32:35], s43 offen' % vaddr)
        g.i('buffer_store_dwordx4 v[124:127], %s, s[32:35], s43 offen offset:%d' % (vaddr, 0))
    def gather_round2(tb, vaddr, soff):
        for e in range(8):
            g.i('v_perm_b32 v%d, v40, v%d, %s' % (96 + e, tb + e // 2, 's40' if e % 2 == 0 else 's41'))
        g.i('v_perm_b32 v104, v40, v%d, s40' % (tb + 4))
        tk = [g.i('ds_read_u16 v%d, v%d' % (108 + e, 96 + e)) for e in range(9)]
        g.wait(tk[-1])
        for p in range(4):
            g.i('v_lshl_or_b32 v%d, v%d, 16, v%d' % (120 + p, 108 + 2 * p + 1, 108 + 2 * p))
            g.i('v_lshl_or_b32 v%d, v%d, 16, v%d' % (124 + p, 108 + 2 * p + 2, 108 + 2 * p + 1))
        g.i('s_add_u32 s43, s42, %d\ns_add_u32 s44, s43, %d' % (soff, KRL * 2))
        g.i('buffer_store_dwordx4 v[120:123], %s, s[32:35], s43 offen' % vaddr)
        g.i('buffer_store_dwordx4 v[124:127], %s, s[32:35], s44 offen' % vaddr)
    g.wait(tt[0]); gather_round2(TB, 'v6', 0)
    g.wait(tt[1]); gather_round2(TB + 6, 'v6', 2048)
    g.wait(tt[2])
    g.i('s_cmp_eq_u32 s22, 0\ns_cbranch_scc1 L_k1C_end')
    g.i('v_cmp_gt_u32 vcc, 16, v1\ns_and_saveexec_b64 s[46:47], vcc\ns_cbranch_execz L_k1C_end')
    g.i('v_lshlrev_b32 v7, 4, v1')
    gather_round2(TB + 12, 'v7', 4096)
    g.label('L_k1C_end')
    stamp(g, 5)
    g.i('s_mov_b64 exec, -1') if STAMPS else None
    stamp_flush(g, 6, int(os.environ.get('K1C_WG', '17')) & 0xffff, 218)
    tl_exit(g, 0, 216)
    g.i('s_endpgm')

def k1(g):
    g.raw(kstart('k1_prep_kernel'))
    tl_entry(g)
    ht_start(g, 0, 200)
    g.i('''
    s_cmp_ge_u32 s2, %d
    s_cbranch_scc1 L_k1_exit
    s_cmp_lt_u32 s2, %d
    s_cbranch_scc1 L_k1_C
    s_cmp_lt_u32 s2, %d
    s_cbranch_scc1 L_k1_A
    ''' % (K1_GRID, K1_NC, K1_NC + K1_NA))
    role_B(g)
    g.label('L_k1_A')
    role_A(g)
    g.label('L_k1_C')
    role_C(g)
    g.label('L_k1_exit')
    g.i('s_endpgm')
    tbl = gather_table()
    g.raw('.p2align 4\n.type K1_TBL,@object\nK1_TBL:')
    for i in range(0, len(tbl), 16):
        g.raw('.short ' + ','.join(str(x) for x in tbl[i:i + 16]))
    g.raw('.size K1_TBL, %d' % (2 * len(tbl)))
```

```python
import re

REG_RE = re.compile(r'^(-|abs\()?([vsa])(\d+)\)?$')
RNG_RE = re.compile(r'^(-|abs\()?([vsa])\[(\d+):(\d+)\]\)?$')


def regs_of(op):
    op = op.strip()
    m = REG_RE.match(op)
    if m:
        return {(m.group(2), int(m.group(3)))}
    m = RNG_RE.match(op)
    if m:
        return {(m.group(2), i) for i in range(int(m.group(3)), int(m.group(4)) + 1)}
    if op == 'vcc':
        return {('s', 'vcc')}
    if op == 'exec':
        return {('s', 'exec')}
    if op == 'm0':
        return {('s', 'm0')}
    return set()


def split_ops(s):
    out, depth, cur = [], 0, ''
    for ch in s:
        if ch in '[(':
            depth += 1
        if ch in '])':
            depth -= 1
        if ch == ',' and depth == 0:
            out.append(cur.strip())
            cur = ''
        else:
            cur += ch
    if cur.strip():
        out.append(cur.strip())
    return out


TRANS = ('v_exp_f32', 'v_log_f32', 'v_rcp_f32', 'v_rsq_f32', 'v_sqrt_f32', 'v_sin_f32', 'v_cos_f32')


class Ins:
    __slots__ = ('text', 'mn', 'kind', 'dst', 'src', 'passes', 'trans', 'dpp', 'wide_store', 'lds_dma', 'nstates')

    def __init__(self, text):
        self.text = text
        t = text.split(';')[0].strip()
        parts = t.split(None, 1)
        self.mn = mn = parts[0]
        rest = parts[1] if len(parts) > 1 else ''
        ops = split_ops(rest)
        mods = ''
        if ops:
            last = ops[-1].split()
            if len(last) > 1:
                ops[-1] = last[0]
                mods = ' '.join(last[1:])
        self.dst, self.src = set(), set()
        self.passes = 0
        self.trans = False
        self.dpp = False
        self.wide_store = False
        self.lds_dma = False
        self.nstates = 1
        R = [regs_of(o) for o in ops]
        if mn.startswith('v_mfma'):
            self.kind = 'mfma'
            self.dst = R[0]
            self.src = R[1] | R[2] | R[3]
            self.passes = 8 if '32x32' in mn else 4
            if 'x2_f32' in mn or 'x1_' in mn:
                self.passes = 16
        elif mn.startswith('v_'):
            self.kind = 'valu'
            base = mn.replace('_e32', '').replace('_e64', '').replace('_dpp', '').replace('_sdwa', '')
            self.trans = base in TRANS
            self.dpp = ('row_' in mods or 'quad_perm' in mods or 'wave_' in mods or mn.endswith('_dpp'))
            if base.startswith('v_cmp'):
                self.dst = R[0]
                self.src = set().union(*R[1:])
                if base.startswith('v_cmpx'):
                    self.dst = self.dst | {('s', 'exec')}
            elif base.startswith('v_permlane') and 'swap' in base:
                self.dst = R[0] | R[1]
                self.src = R[0] | R[1]
            elif base in ('v_add_co_u32', 'v_sub_co_u32', 'v_addc_co_u32', 'v_subb_co_u32'):
                self.dst = R[0] | R[1]
                self.src = set().union(*R[2:])
            elif base in ('v_fmac_f32', 'v_dot2c_f32_bf16', 'v_writelane_b32'):
                self.dst = R[0]
                self.src = set().union(*R)
            else:
                self.dst = R[0]
                self.src = set().union(*R[1:]) if len(R) > 1 else set()
                if base.startswith('v_cndmask') and len(R) == 3:
                    self.src |= {('s', 'vcc')}
        elif mn.startswith('ds_'):
            self.kind = 'ds'
            if mn.startswith('ds_read') or mn.startswith('ds_bpermute') or mn.startswith('ds_swizzle') or mn.startswith('ds_permute'):
                self.dst = R[0]
                self.src = set().union(*R[1:])
            else:
                self.src = set().union(*R)
        elif mn.startswith('buffer_') or mn.startswith('global_'):
            self.kind = 'vmem'
            allm = mods + ' ' + rest
            if mn in ('buffer_wbl2', 'buffer_inv'):
                pass
            elif mn.startswith('global_load_lds') or (mn.startswith('buffer_load') and re.search(r'\blds\b', allm)):
                self.lds_dma = True
                self.src = set().union(*R) | {('s', 'm0')}
            elif '_load' in mn:
                self.dst = R[0]
                self.src = set().union(*R[1:])
            elif '_store' in mn:
                self.src = set().union(*R)
                self.wide_store = mn.endswith('x4') or mn.endswith('x3')
                if self.wide_store:
                    self.dst = set()
            elif '_atomic' in mn:
                self.src = set().union(*R)
                if 'sc0' in allm:
                    self.dst = R[0]
        elif mn == 's_nop':
            self.kind = 'nop'
            self.nstates = int(ops[0], 0) + 1
        elif mn in ('s_waitcnt', 's_barrier', 's_endpgm', 's_setprio', 's_sleep'):
            self.kind = 'ctl'
        elif mn.startswith('s_cbranch') or mn == 's_branch':
            self.kind = 'br'
        elif mn.startswith('s_load') or mn.startswith('s_buffer_load') or mn in ('s_memtime', 's_memrealtime'):
            self.kind = 'smem'
            self.dst = R[0]
            self.src = set().union(*R[1:]) if len(R) > 1 else set()
        elif mn.startswith('s_'):
            self.kind = 'salu'
            if mn.startswith('s_cmp') or mn.startswith('s_bitcmp'):
                self.src = set().union(*R)
            elif 'saveexec' in mn:
                self.dst = R[0] | {('s', 'exec')}
                self.src = set().union(*R[1:]) | {('s', 'exec')}
            else:
                self.dst = R[0] if R else set()
                self.src = set().union(*R[1:]) if len(R) > 1 else set()
        else:
            raise ValueError('unknown instruction ' + text)

    def store_data(self):
        t = self.text.split(';')[0].strip()
        ops = split_ops(t.split(None, 1)[1])
        if self.mn.startswith('buffer_'):
            return regs_of(ops[0])
        return regs_of(ops[1].split()[0])


def need_states(p, c):
    n = 0
    vdst = {r for r in p.dst if r[0] in 'va'}
    sdst = {r for r in p.dst if r[0] == 's'}
    if p.kind == 'valu':
        if c.kind == 'mfma' and vdst & c.src:
            n = max(n, 2)
        if c.kind == 'mfma' and ('s', 'exec') in sdst:
            n = max(n, 4)
        if c.kind == 'valu':
            if c.dpp and vdst & c.src:
                n = max(n, 2)
            if c.dpp and ('s', 'exec') in sdst:
                n = max(n, 5)
            if c.mn.startswith('v_permlane') and vdst & c.src:
                n = max(n, 2)
            if (c.mn.startswith('v_readlane') or c.mn.startswith('v_readfirstlane')) and vdst & c.src:
                n = max(n, 1)
            if (c.mn.startswith('v_readlane') or c.mn.startswith('v_writelane')) and sdst & c.src:
                n = max(n, 4)
            if sdst & c.src:
                n = max(n, 2)
            if p.trans and not c.trans and vdst & c.src:
                n = max(n, 1)
            if p.trans and c.trans and vdst & c.src:
                n = max(n, 1)
        if p.mn.startswith('v_dot') and vdst & (c.src | c.dst):
            ok = False
            if c.mn == p.mn:
                ops = split_ops(c.text.split(';')[0].split(None, 1)[1])
                ab = regs_of(ops[1]) | regs_of(ops[2])
                ok = not (vdst & ab)
            if not ok:
                n = max(n, 3)
        if c.kind == 'vmem' and sdst & c.src:
            n = max(n, 5)
        if c.kind in ('salu', 'br') and sdst & c.src:
            n = max(n, 3)
        if c.kind == 'br' and ('s', 'vcc') in sdst and 'vcc' in c.mn:
            n = max(n, 5)
        if c.kind == 'br' and ('s', 'exec') in sdst and 'exec' in c.mn:
            n = max(n, 5)
    if p.kind == 'mfma':
        tbl = {4: (8, 6), 8: (12, 10), 16: (20, 18)}[p.passes]
        if c.kind == 'mfma':
            t = c.text.split(';')[0]
            ops = split_ops(t.split(None, 1)[1])
            ab = regs_of(ops[1]) | regs_of(ops[2])
            cc = regs_of(ops[3].split()[0])
            if vdst & ab:
                n = max(n, tbl[0])
            if vdst & cc and not (cc == vdst and c.passes == p.passes):
                n = max(n, tbl[1])
            if vdst & c.dst and not (cc == vdst and c.dst == vdst) and not (vdst & cc):
                n = max(n, tbl[1])
        elif c.kind in ('valu', 'ds', 'vmem'):
            if vdst & (c.src | c.dst):
                n = max(n, tbl[0])
        if c.kind == 'valu':
            t = p.text.split(';')[0]
            ops = split_ops(t.split(None, 1)[1])
            cc = regs_of(ops[3].split()[0])
            if cc & c.dst:
                n = max(n, {4: 3, 8: 7, 16: 15}[p.passes])
    if p.kind == 'salu' and ('s', 'm0') in sdst and c.lds_dma:
        n = max(n, 1)
    if p.kind == 'vmem' and p.wide_store:
        if c.kind == 'valu' and p.store_data() & c.dst:
            n = max(n, 2)
        elif p.store_data() & c.dst:
            n = max(n, 1)
    return n


class Tok:
    __slots__ = ('cls', 'idx')

    def __init__(self, cls, idx):
        self.cls, self.idx = cls, idx


class G:
    def __init__(self):
        self.items = []
        self.nvm = 0
        self.nlg = 0
        self.vm_done = 0
        self.lg_done = 0
        self.smem_out = False

    def raw(self, s):
        self.items.append(s)

    def label(self, name):
        self.items.append(name + ':')

    def i(self, text):
        tok = None
        for line in text.strip().split('\n'):
            line = line.strip()
            if not line or line.startswith(';'):
                continue
            if line.endswith(':'):
                self.items.append(line)
                continue
            ins = Ins(line)
            self.items.append(ins)
            if ins.kind == 'vmem':
                self.nvm += 1
                tok = Tok('vm', self.nvm)
            elif ins.kind == 'ds':
                self.nlg += 1
                tok = Tok('lg', self.nlg)
            elif ins.kind == 'smem':
                self.smem_out = True
            elif ins.mn == 's_waitcnt':
                m = re.search(r'vmcnt\((\d+)\)', line)
                if m:
                    self.vm_done = max(self.vm_done, self.nvm - int(m.group(1)))
                m = re.search(r'lgkmcnt\((\d+)\)', line)
                if m:
                    if int(m.group(1)) == 0:
                        self.smem_out = False
                        self.lg_done = self.nlg
                    elif not self.smem_out:
                        self.lg_done = max(self.lg_done, self.nlg - int(m.group(1)))
        return tok

    def wait(self, *toks):
        vm = max([t.idx for t in toks if t is not None and t.cls == 'vm'], default=0)
        lg = max([t.idx for t in toks if t is not None and t.cls == 'lg'], default=0)
        s = []
        if vm > self.vm_done:
            s.append('vmcnt(%d)' % min(63, self.nvm - vm))
        if lg > self.lg_done:
            n = 0 if self.smem_out else min(15, self.nlg - lg)
            s.append('lgkmcnt(%d)' % n)
        if s:
            self.i('s_waitcnt ' + ' '.join(s))

    def wait_all(self):
        self.i('s_waitcnt vmcnt(0) lgkmcnt(0)')

    def wait_lg0(self):
        self.i('s_waitcnt lgkmcnt(0)')

    def reset_counts(self):
        self.vm_done = self.nvm
        self.lg_done = self.nlg

    def finalize(self, window=24):
        out = []
        hist = []
        nnop = 0
        for it in self.items:
            if isinstance(it, str):
                out.append(it)
                continue
            need = 0
            dist = 0
            for p in reversed(hist):
                n = need_states(p, it)
                if n > dist:
                    need = max(need, n - dist)
                dist += p.nstates
                if dist >= window:
                    break
            while need > 0:
                k = min(need, 16)
                nop = Ins('s_nop %d' % (k - 1))
                out.append(nop)
                hist.append(nop)
                need -= k
                nnop += 1
            out.append(it)
            hist.append(it)
            if len(hist) > 64:
                hist = hist[-48:]
        self.nnop = nnop
        lines = []
        for it in out:
            if isinstance(it, str):
                lines.append(it)
            else:
                lines.append('\t' + it.text)
        return '\n'.join(lines) + '\n'


def vr(a, n=1):
    return 'v%d' % a if n == 1 else 'v[%d:%d]' % (a, a + n - 1)


def ar(a, n=1):
    return 'a%d' % a if n == 1 else 'a[%d:%d]' % (a, a + n - 1)


def sr(a, n=1):
    return 's%d' % a if n == 1 else 's[%d:%d]' % (a, a + n - 1)


def kstart(name):
    return '.globl %s\n.p2align 8\n.type %s,@function\n%s:' % (name, name, name)


def kdesc(name, vgpr, accum, sgpr=102):
    return ('.amdhsa_kernel %s\n  .amdhsa_next_free_vgpr %d\n  .amdhsa_next_free_sgpr %d\n  .amdhsa_accum_offset %d\n'
            '  .amdhsa_group_segment_fixed_size 0\n  .amdhsa_kernarg_size 144\n  .amdhsa_user_sgpr_count 2\n'
            '  .amdhsa_user_sgpr_kernarg_segment_ptr 1\n  .amdhsa_system_sgpr_workgroup_id_x 1\n'
            '  .amdhsa_float_denorm_mode_32 3\n.end_amdhsa_kernel\n') % (name, vgpr, sgpr, accum)


import os
STAMPS = os.environ.get('STAMPS', '') != ''

def stamp(g, k):
    if not STAMPS: return
    g.i('s_memtime s[94:95]\ns_memrealtime s[92:93]\ns_waitcnt lgkmcnt(0)\ns_mov_b32 s%d, s94\ns_mov_b32 s%d, s92' % (70 + 2 * k, 71 + 2 * k))

def stamp_rt(g, k):
    pass

def stamp_flush(g, n, wg, vtmp=250):
    if not STAMPS: return
    n = min(n, 11)
    lab = 'L_stamp_%d' % len(g.items)
    g.i('s_cmp_lg_u32 s2, %d\ns_cbranch_scc1 %s' % (wg, lab))
    g.i('s_load_dwordx2 s[68:69], s[0:1], 128\ns_waitcnt lgkmcnt(0)')
    g.i('v_mov_b32 v%d, 0' % vtmp)
    g.i('v_cmp_eq_u32 vcc, 0, v0\ns_and_saveexec_b64 s[66:67], vcc\ns_cbranch_execz %s_r' % lab)
    for k in range(2 * n):
        g.i('v_mov_b32 v%d, s%d\nglobal_store_dword v%d, v%d, s[68:69] offset:%d' % (vtmp + 1, 70 + k, vtmp, vtmp + 1, 4 * k))
    g.label(lab + '_r')
    g.i('s_mov_b64 exec, s[66:67]')
    g.label(lab)


TL = os.environ.get('TL', '') != ''
TL_BASE = 48 << 20
def tl_entry(g):
    if not TL: return
    g.i('s_memrealtime s[96:97]')
def tl_exit(g, kidx, vtmp=248):
    if not TL: return
    lab = 'L_tl_%d' % len(g.items)
    g.i('s_waitcnt vmcnt(0) lgkmcnt(0)')
    g.i('s_mov_b64 exec, -1')
    g.i('s_memrealtime s[98:99]\ns_load_dwordx2 s[100:101], s[0:1], 136\ns_waitcnt lgkmcnt(0)')
    g.i('v_lshrrev_b32 v%d, 6, v0\nv_mov_b32 v%d, s96\nv_mov_b32 v%d, s98' % (vtmp, vtmp + 2, vtmp + 3))
    g.i('s_lshl_b32 s96, s2, 2\nv_add_u32 v%d, s96, v%d\nv_lshlrev_b32 v%d, 3, v%d' % (vtmp, vtmp, vtmp, vtmp))
    g.i('v_add_u32 v%d, %d, v%d' % (vtmp, TL_BASE + kidx * 65536, vtmp))
    g.i('global_store_dwordx2 v%d, v[%d:%d], s[100:101]' % (vtmp, vtmp + 2, vtmp + 3))


HT = os.environ.get('HT', '') != ''
HT_BASE = 47 << 20
def ht_start(g, kidx, vt):
    if not HT: return
    lab = 'L_ht_%d_%d' % (kidx, len(g.items))
    g.i('s_cmp_lg_u32 s2, 0\ns_cbranch_scc1 %s' % lab)
    g.i('s_memrealtime s[96:97]\ns_load_dwordx2 s[100:101], s[0:1], 136\ns_waitcnt lgkmcnt(0)')
    g.i('v_mov_b32 v%d, %d\nv_mov_b32 v%d, s96\nglobal_store_dword v%d, v%d, s[100:101]' % (vt, HT_BASE + 4 * kidx, vt + 1, vt, vt + 1))
    g.i('s_waitcnt vmcnt(0)')
    g.label(lab)
def ht_final(g, wg, nk, own_index, vt):
    if not HT: return
    lab = 'L_htf_%d' % len(g.items)
    g.i('s_cmp_lg_u32 s2, %d\ns_cbranch_scc1 %s' % (wg, lab))
    g.i('s_waitcnt vmcnt(0)\ns_mov_b64 exec, -1')
    g.i('s_memrealtime s[96:97]\ns_load_dwordx2 s[100:101], s[0:1], 136\ns_load_dwordx2 s[98:99], s[0:1], 128\ns_waitcnt lgkmcnt(0)')
    g.i('v_and_b32 v%d, 7, v0\nv_lshlrev_b32 v%d, 2, v%d\nv_add_u32 v%d, %d, v%d' % (vt, vt, vt, vt + 1, HT_BASE, vt))
    g.i('global_load_dword v%d, v%d, s[100:101] sc1\ns_waitcnt vmcnt(0)' % (vt + 2, vt + 1))
    g.i('v_mov_b32 v%d, s96\nv_cmp_eq_u32 vcc, %d, v0\ns_nop 1\nv_cndmask_b32 v%d, v%d, v%d, vcc' % (vt + 3, nk, vt + 2, vt + 2, vt + 3))
    g.i('v_cmp_gt_u32 vcc, 8, v0\ns_and_saveexec_b64 s[96:97], vcc\ns_cbranch_execz %s' % lab)
    g.i('global_store_dword v%d, v%d, s[98:99]' % (vt, vt + 2))
    g.label(lab)
```

```python
from glib import *
from layout import *
import numpy as np, os

LOG2E = 0x3fb8aa3b
INV2PI = 0x3e22f983

def f2u(x): return int(np.float32(x).view(np.uint32))

K1_NC, K1_NA, K1_NB = 288, 64, 108
K1_CODEPF = os.environ.get('CPF', '1') == '1'
K1_GRID = K1_NC + K1_NA + K1_NB + (1 if K1_CODEPF else 0)
K1_LDS = 75776

def bf16_round_int(l):
    u = np.float32(l).view(np.uint32)
    r = ((int(u) + 0x7FFF + ((int(u) >> 16) & 1)) >> 16) << 16
    return int(np.uint32(r).view(np.float32))

def gather_table():
    t = []
    for i in range(8 * 274):
        l = KC0 - i
        t.append(2 * bf16_round_int(l) if 0 <= l <= 2047 else 4600)
    return t

def ws_srd(g, s, ptr):
    g.i('s_mov_b32 %s, %s\ns_mov_b32 %s, %s\ns_mov_b32 %s, %d\ns_mov_b32 %s, 0x20000' % (sr(s), sr(ptr), sr(s + 1), sr(ptr + 1), sr(s + 2), WS_END, sr(s + 3)))

def srd(g, s, ptr, nbytes):
    g.i('s_mov_b32 %s, %s\ns_mov_b32 %s, %s\ns_mov_b32 %s, %d\ns_mov_b32 %s, 0x20000' % (sr(s), sr(ptr), sr(s + 1), sr(ptr + 1), sr(s + 2), nbytes, sr(s + 3)))

def rb_inplace(g, v, tmp=None):
    g.i('v_cvt_pk_bf16_f32 %s, %s, %s' % (vr(v), vr(v), vr(v)))
    g.i('v_lshlrev_b32 %s, 16, %s' % (vr(v), vr(v)))

def role_B(g):
    g.i('''
    s_load_dwordx2 s[4:5], s[0:1], %d
    s_load_dwordx2 s[6:7], s[0:1], %d
    s_load_dwordx2 s[8:9], s[0:1], %d
    s_sub_u32 s3, s2, %d
    s_mul_i32 s20, s3, 2428
    s_lshr_b32 s20, s20, 16          ; kq
    s_mul_i32 s21, s20, 27
    s_sub_u32 s21, s3, s21           ; cc
    v_lshrrev_b32 v1, 4, v0          ; rg
    v_and_b32 v2, 15, v0             ; cl
    s_mul_i32 s22, s20, 144
    v_add_u32 v3, s22, v1            ; row0
    s_movk_i32 s23, 6912
    v_mul_lo_u32 v4, v3, s23
    s_lshl_b32 s24, s21, 8
    v_lshl_add_u32 v5, v2, 4, s24
    v_add_u32 v4, v4, v5             ; w_mod byte offset
    v_lshlrev_b32 v3, 1, v3          ; c byte offset
    s_waitcnt lgkmcnt(0)
    ''' % (KA['c'], KA['wmod'], KA['ws'], K1_NC + K1_NA))
    srd(g, 12, 4, 1152)
    srd(g, 16, 6, 576 * 6912)
    ws_srd(g, 24, 8)
    ct, wt = [], []
    for i in range(9):
        ct.append(g.i('buffer_load_ushort v%d, v3, s[12:15], 0 offen offset:%d' % (10 + i, 32 * i)))
    for i in range(9):
        g.i('s_mov_b32 s30, %d' % (110592 * i))
        wt.append(g.i('buffer_load_dwordx4 %s, v4, s[16:19], s30 offen' % vr(24 + 4 * i, 4)))
    for j in range(8): g.i('v_mov_b32 v%d, 0' % (64 + j))
    g.i('s_mov_b32 s31, 0x%x' % (LOG2E | 0x80000000))
    g.wait(ct[-1])
    for i in range(9):
        c = 10 + i
        g.i('v_lshlrev_b32 v%d, 16, v%d' % (c, c))
    for i in range(9): g.i('v_mul_f32 v%d, s31, v%d' % (72 + i, 10 + i))
    for i in range(9): g.i('v_exp_f32 v%d, v%d' % (72 + i, 72 + i))
    for i in range(9): g.i('v_add_f32 v%d, 1.0, v%d' % (72 + i, 72 + i))
    for i in range(9): g.i('v_rcp_f32 v%d, v%d' % (72 + i, 72 + i))
    for i in range(9): g.i('v_mul_f32 v%d, v%d, v%d' % (10 + i, 10 + i, 72 + i))
    for i in range(9): g.i('v_cvt_pk_bf16_f32 v%d, v%d, v%d' % (10 + i, 10 + i, 10 + i))
    for i in range(9): g.i('v_lshlrev_b32 v%d, 16, v%d' % (10 + i, 10 + i))
    g.i('s_mov_b32 s32, 0xffff0000')
    for i in range(9):
        g.wait(wt[i])
        for j in range(4):
            w = 24 + 4 * i + j
            g.i('v_lshlrev_b32 v82, 16, v%d\nv_and_b32 v83, s32, v%d' % (w, w))
            g.i('v_fmac_f32 v%d, v82, v%d\nv_fmac_f32 v%d, v83, v%d' % (64 + 2 * j, 10 + i, 65 + 2 * j, 10 + i))
    g.i('v_lshlrev_b32 v6, 9, v1\nv_lshl_add_u32 v6, v2, 5, v6')
    g.i('ds_write_b128 v6, v[64:67]\nds_write_b128 v6, v[68:71] offset:16')
    g.i('s_waitcnt lgkmcnt(0)\ns_barrier')
    g.i('v_cmp_gt_u32 vcc, 128, v0\ns_and_saveexec_b64 s[34:35], vcc\ns_cbranch_execz L_k1B_end')
    g.i('v_lshlrev_b32 v7, 2, v0')
    toks = [g.i('ds_read_b32 v%d, v7 offset:%d' % (24 + r, 512 * r)) for r in range(16)]
    g.wait(toks[-1])
    for st in (8, 4, 2, 1):
        for r in range(st): g.i('v_add_f32 v%d, v%d, v%d' % (24 + r, 24 + r, 24 + r + st))
    g.i('''
    s_mul_i32 s33, s20, 13824
    s_lshl_b32 s36, s21, 9
    s_add_u32 s33, s33, s36
    buffer_store_dword v24, v7, s[24:27], s33 offen
    L_k1B_end:
    ''')
    tl_exit(g, 0, 200)
    g.i('s_endpgm')

def role_A(g):
    RS = 1184
    RAW, FP = 16, 56
    g.i('''
    s_load_dwordx2 s[4:5], s[0:1], %d
    s_load_dwordx2 s[8:9], s[0:1], %d
    s_sub_u32 s3, s2, %d              ; tb
    v_lshrrev_b32 v1, 3, v0           ; row
    v_and_b32 v2, 7, v0               ; sub
    s_lshl_b32 s20, s3, 5
    v_add_u32 v3, s20, v1
    s_movk_i32 s21, 1152
    v_mul_lo_u32 v3, v3, s21
    v_lshl_add_u32 v3, v2, 4, v3      ; global byte offset
    s_movk_i32 s21, %d
    v_mul_lo_u32 v4, v1, s21
    v_lshl_add_u32 v4, v2, 4, v4      ; LDS write address
    s_waitcnt lgkmcnt(0)
    ''' % (KA['x'], KA['ws'], K1_NC, RS))
    srd(g, 12, 4, XBYTES)
    ws_srd(g, 24, 8)
    stamp(g, 0)
    lt = [g.i('buffer_load_dwordx4 %s, v3, s[12:15], 0 offen offset:%d' % (vr(RAW + 4 * i, 4), 128 * i)) for i in range(9)]
    g.i('s_mov_b32 s32, 0xffff0000\nv_mov_b32 v6, 0\nv_mov_b32 v7, 0')
    for i in range(9):
        g.wait(lt[i])
        g.i('ds_write_b128 v4, %s offset:%d' % (vr(RAW + 4 * i, 4), 128 * i))
        for j in range(4):
            w = RAW + 4 * i + j; f = FP + 8 * i + 2 * j
            g.i('v_lshlrev_b32 v%d, 16, v%d\nv_and_b32 v%d, s32, v%d' % (f, w, f + 1, w))
        for j in range(4):
            f = FP + 8 * i + 2 * j
            g.i('v_pk_add_f32 v[6:7], v[6:7], %s' % vr(f, 2))
    def red8(v):
        g.i('v_add_f32_dpp %s, %s, %s quad_perm:[1,0,3,2] row_mask:0xf bank_mask:0xf' % (v, v, v))
        g.i('v_add_f32_dpp %s, %s, %s quad_perm:[2,3,0,1] row_mask:0xf bank_mask:0xf' % (v, v, v))
        g.i('v_add_f32_dpp %s, %s, %s row_half_mirror row_mask:0xf bank_mask:0xf' % (v, v, v))
    stamp(g, 1)
    g.i('v_add_f32 v6, v6, v7')
    red8('v6')
    g.i('s_mov_b32 s33, 0x%x' % f2u(1.0 / 576))
    g.i('v_mul_f32 v8, s33, v6        ; mean')
    g.i('v_sub_f32 v10, 0, v8\nv_sub_f32 v11, 0, v8\nv_mov_b32 v6, 0\nv_mov_b32 v7, 0')
    for i in range(36):
        f = FP + 2 * i
        t = 128 + 2 * (i % 4)
        g.i('v_pk_add_f32 %s, %s, v[10:11]' % (vr(t, 2), vr(f, 2)))
        g.i('v_pk_fma_f32 v[6:7], %s, %s, v[6:7]' % (vr(t, 2), vr(t, 2)))
    g.i('v_add_f32 v6, v6, v7')
    red8('v6')
    g.i('v_mul_f32 v6, s33, v6        ; var')
    rb_inplace(g, 6)
    g.i('v_add_f32 v6, 0x%x, v6' % f2u(1e-5))
    rb_inplace(g, 6)
    g.i('v_sqrt_f32 v6, v6')
    rb_inplace(g, 6)
    g.i('v_rcp_f32 v12, v6')
    rb_inplace(g, 8)
    g.i('v_sub_f32 v10, 0, v8\nv_sub_f32 v11, 0, v8\nv_mov_b32 v13, v12')
    for i in range(36):
        f = FP + 2 * i
        g.i('v_pk_add_f32 %s, %s, v[10:11]' % (vr(f, 2), vr(f, 2)))
    for i in range(36):
        f = FP + 2 * i
        g.i('v_cvt_pk_bf16_f32 v%d, v%d, v%d' % (RAW + i, f, f + 1))
    for i in range(36):
        f = FP + 2 * i; w = RAW + i
        g.i('v_lshlrev_b32 v%d, 16, v%d\nv_and_b32 v%d, s32, v%d' % (f, w, f + 1, w))
    for i in range(36):
        f = FP + 2 * i
        g.i('v_pk_mul_f32 %s, %s, v[12:13]' % (vr(f, 2), vr(f, 2)))
    for i in range(36):
        f = FP + 2 * i
        g.i('v_cvt_pk_bf16_f32 v%d, v%d, v%d' % (RAW + i, f, f + 1))
        if i % 4 == 3:
            g.i('ds_write_b128 v4, %s offset:%d' % (vr(RAW + i - 3, 4), 37888 + 128 * (i // 4)))
    stamp(g, 2)
    g.i('''
    v_and_b32 v1, 63, v0
    v_lshrrev_b32 v2, 6, v0           ; wave
    v_and_b32 v3, 15, v1              ; i
    v_lshrrev_b32 v5, 4, v1           ; q
    v_lshrrev_b32 v6, 2, v3
    v_lshl_add_u32 v6, v5, 3, v6      ; row = 8q + (i>>2)
    s_movk_i32 s21, %d
    v_mul_lo_u32 v6, v6, s21
    v_and_b32 v7, 3, v3
    v_lshl_add_u32 v6, v7, 3, v6
    v_lshl_add_u32 v6, v2, 5, v6      ; + wave*32 bytes (d tile = wave + 4k)
    v_lshlrev_b32 v7, 6, v3
    v_lshl_add_u32 v7, v5, 4, v7
    v_lshl_add_u32 v7, v2, 10, v7     ; store offset: wave*1024 + i*64 + q*16
    s_mul_i32 s22, s3, 36864
    s_waitcnt lgkmcnt(0)
    s_barrier
    ''' % RS)
    stamp(g, 3)
    for arr, (lo, wo) in enumerate(((0, WS_XT), (37888, WS_XNT))):
        toks = []
        for k in range(9):
            r = 16 + 4 * k + 40 * arr
            g.i('ds_read_b64_tr_b16 %s, v6 offset:%d' % (vr(r, 2), lo + 128 * k))
            toks.append(g.i('ds_read_b64_tr_b16 %s, v6 offset:%d' % (vr(r + 2, 2), lo + 128 * k + 4 * RS)))
        for k in range(9):
            r = 16 + 4 * k + 40 * arr
            g.i('s_add_u32 s23, s22, %d' % (wo + 4096 * k))
            g.wait(toks[k])
            g.i('buffer_store_dwordx4 %s, v7, s[24:27], s23 offen' % vr(r, 4))
    stamp(g, 4)
    stamp_flush(g, 5, int(os.environ.get('K1A_WG', '-1')) & 0xffff, 204)
    tl_exit(g, 0, 200)
    g.i('s_endpgm')

def role_C(g):
    UOFF = [4608, 34176]; VOFF_REL = 24 * 528; RS = 528
    g.i('''
    s_load_dwordx4 s[4:7], s[0:1], %d       ; are, aim
    s_load_dwordx4 s[8:11], s[0:1], %d      ; bre, bim
    s_load_dwordx4 s[12:15], s[0:1], %d     ; cre, cim
    s_load_dwordx2 s[16:17], s[0:1], %d     ; log_dt
    s_load_dwordx2 s[18:19], s[0:1], %d     ; ws
    v_lshrrev_b32 v2, 6, v0
    v_and_b32 v1, 63, v0                    ; lane
    s_nop 0
    v_readfirstlane_b32 s20, v2             ; wave
    s_nop 3
    s_lshr_b32 s21, s20, 1                  ; channel in WG
    s_and_b32 s22, s20, 1                   ; mode half
    s_lshl_b32 s23, s2, 1
    s_add_u32 s23, s23, s21                 ; d
    s_lshl_b32 s24, s22, 6
    v_add_u32 v3, s24, v1                   ; n (also gather chunk index within the round)
    s_lshl_b32 s25, s23, 8
    v_lshl_add_u32 v4, v3, 1, s25           ; byte offset in [576][128] bf16
    s_lshl_b32 s26, s23, 1
    v_mov_b32 v5, s26
    s_getpc_b64 s[28:29]
    L_k1C_pc:
    s_add_u32 s28, s28, K1_TBL-L_k1C_pc
    s_addc_u32 s29, s29, 0
    s_waitcnt lgkmcnt(0)
    ''' % (KA['are'], KA['bre'], KA['cre'], KA['ldt'], KA['ws']))
    stamp(g, 0)
    t = []
    for k, b in enumerate((4, 6, 8, 10, 12, 14)):
        t.append(g.i('global_load_ushort v%d, v4, %s' % (10 + k, sr(b, 2))))
    t.append(g.i('global_load_ushort v16, v5, s[16:17]'))
    g.i('v_lshlrev_b32 v6, 4, v3\nv_lshlrev_b32 v7, 4, v1\nv_min_u32 v7, 256, v7')
    TB = 200
    tt = []
    tt.append(g.i('global_load_dwordx4 %s, v6, s[28:29]\nglobal_load_ushort v%d, v6, s[28:29] offset:16' % (vr(TB, 4), TB + 4)))
    tt.append(g.i('global_load_dwordx4 %s, v6, s[28:29] offset:2048\nglobal_load_ushort v%d, v6, s[28:29] offset:2064' % (vr(TB + 6, 4), TB + 10)))
    g.i('v_add_u32 v7, 4096, v7')
    tt.append(g.i('global_load_dwordx4 %s, v7, s[28:29]\nglobal_load_ushort v%d, v7, s[28:29] offset:16' % (vr(TB + 12, 4), TB + 16)))
    ws_srd(g, 32, 18)
    g.i('s_mul_i32 s30, s21, %d\ns_add_u32 s30, s30, %d' % (UOFF[1] - UOFF[0], UOFF[0]))
    g.i('v_lshl_add_u32 v8, v3, 2, s30')
    g.i('s_mov_b32 s31, 0x%x\ns_mov_b32 s36, 0x%x' % (LOG2E, INV2PI))
    g.wait(t[-1])
    stamp(g, 1)
    for k in range(7): g.i('v_lshlrev_b32 v%d, 16, v%d' % (10 + k, 10 + k))
    g.i('v_mul_f32 v16, s31, v16\nv_exp_f32 v16, v16')
    rb_inplace(g, 16)
    g.i('''
    v_mul_f32 v10, v16, v10                 ; zre
    v_mul_f32 v11, v16, v11                 ; zim
    v_mul_f32 v12, v16, v12
    v_mul_f32 v13, v16, v13
    v_mul_f32 v20, v14, v12
    v_mul_f32 v21, v14, v13
    v_fma_f32 v20, -v15, v13, v20
    v_fma_f32 v21, v15, v12, v21
    v_mul_f32 v10, s31, v10
    v_mul_f32 v11, s36, v11
    ''')
    def cexp(dst, scale):
        if scale != 1:
            g.i('v_mul_f32 v17, 0x%x, v10\nv_mul_f32 v18, 0x%x, v11' % (f2u(scale), f2u(scale)))
        else:
            g.i('v_mov_b32 v17, v10\nv_mov_b32 v18, v11')
        g.i('v_rndne_f32 v19, v18\nv_exp_f32 v17, v17\nv_sub_f32 v18, v18, v19')
        g.i('v_cos_f32 v%d, v18\nv_sin_f32 v%d, v18' % (dst, dst + 1))
        g.i('v_mul_f32 v%d, v17, v%d\nv_mul_f32 v%d, v17, v%d' % (dst, dst, dst + 1, dst + 1))
    def cmul(d, a, b):
        g.i('v_mul_f32 v%d, v%d, v%d' % (d, a, b))
        g.i('v_mul_f32 v%d, v%d, v%d' % (d + 1, a, b + 1))
        g.i('v_fma_f32 v%d, -v%d, v%d, v%d' % (d, a + 1, b + 1, d))
        g.i('v_fma_f32 v%d, v%d, v%d, v%d' % (d + 1, a + 1, b, d + 1))
    pk = [0]
    def putU(row, a):
        p = 60 + pk[0] % 8; pk[0] += 1
        g.i('v_cvt_pk_bf16_f32 v%d, v%d, -v%d' % (p, a, a + 1))
        g.i('ds_write_b32 v8, v%d offset:%d' % (p, row * RS))
    def putV(row, a):
        p = 60 + pk[0] % 8; pk[0] += 1
        g.i('v_cvt_pk_bf16_f32 v%d, v%d, v%d' % (p, a, a + 1))
        g.i('ds_write_b32 v8, v%d offset:%d' % (p, VOFF_REL + row * RS))
    Z, W256, W2, W4, W8 = 22, 24, 26, 28, 30
    cexp(Z, 1); cexp(W256, 256.0)
    cmul(W2, Z, Z); cmul(W4, W2, W2); cmul(W8, W4, W4)
    CB = 20
    putU(0, CB)
    x, y = 32, 34
    cur = CB
    for i in range(1, 8):
        nxt = x if cur != x else y
        cmul(nxt, cur, Z); putU(i, nxt); cur = nxt
    A, B = 36, 38
    cmul(A, CB, W256); putU(8, A)
    cur = A
    for i in range(1, 4):
        nxt = x if cur != x else y
        cmul(nxt, cur, W2); putU(8 + i, nxt); cur = nxt
    cmul(B, A, W256); putU(12, B); cmul(x, B, W4); putU(13, x)
    cmul(A, B, W256); putU(14, A); cmul(x, A, W4); putU(15, x)
    cur = A
    for i in range(5):
        nxt = B if cur == A else A
        cmul(nxt, cur, W256); putU(16 + i, nxt); cur = nxt
    g.i('v_mov_b32 v%d, 1.0\nv_mov_b32 v%d, 0' % (x, x + 1))
    putV(0, x); putV(1, W8)
    cur = W8
    for j in range(2, 32):
        nxt = x if cur != x else y
        cmul(nxt, cur, W8); putV(j, nxt); cur = nxt
    stamp(g, 2)
    g.i('s_waitcnt lgkmcnt(0)\ns_barrier')
    stamp(g, 3)
    g.i('s_cmp_lg_u32 s22, 0\ns_cbranch_scc1 L_k1C_gather')
    g.i('''
    v_and_b32 v9, 31, v1                    ; row / column index
    v_lshrrev_b32 v17, 5, v1                ; half
    s_movk_i32 s37, %d
    v_mul_lo_u32 v18, v9, s37
    v_lshl_add_u32 v18, v17, 4, v18
    v_add_u32 v18, s30, v18
    ''' % RS)
    ACC = 64
    fr = []
    for ks in range(16):
        ra = 96 + 8 * (ks % 8)
        if ks >= 8: pass
        g.i('ds_read_b128 %s, v18 offset:%d' % (vr(ra, 4), 32 * ks))
        fr.append(g.i('ds_read_b128 %s, v18 offset:%d' % (vr(ra + 4, 4), VOFF_REL + 32 * ks)))
        if ks >= 7 or ks == 15:
            k0 = ks - 7
            g.wait(fr[k0])
            r0 = 96 + 8 * (k0 % 8)
            g.i('v_mfma_f32_32x32x16_bf16 %s, %s, %s, %s' % (vr(ACC, 16), vr(r0, 4), vr(r0 + 4, 4), '0' if k0 == 0 else vr(ACC, 16)))
    for k0 in range(9, 16):
        g.wait(fr[k0])
        r0 = 96 + 8 * (k0 % 8)
        g.i('v_mfma_f32_32x32x16_bf16 %s, %s, %s, %s' % (vr(ACC, 16), vr(r0, 4), vr(r0 + 4, 4), vr(ACC, 16)))
    g.i('''
    s_lshl_b32 s38, s21, 16
    v_lshl_add_u32 v19, v9, 4, s38          ; Kf + 16 j
    v_lshl_add_u32 v40, v17, 3, v19         ; + 8h
    v_mov_b32 v41, 0
    v_mov_b32 v42, s38
    ds_write_b16 v42, v41 offset:4600
    ''')
    for r in range(12):
        g.i('v_cvt_pk_bf16_f32 v%d, v%d, v%d' % (44 + r, ACC + r, ACC + r))
    for r in range(4):
        g.i('ds_write_b16 v40, v%d offset:%d' % (44 + r, 2 * r))
    for r, delta in zip(range(4, 8), (512, 516, 1016, 1020)):
        g.i('s_movk_i32 s39, %d\nv_mad_u32_u24 v43, v17, s39, v19' % delta)
        g.i('ds_write_b16 v43, v%d offset:%d' % (44 + r, 512 + 4 * (r - 4)))
    g.i('s_movk_i32 s39, 2048\nv_mad_u32_u24 v43, v17, s39, v19')
    g.i('ds_write_b16 v43, v52 offset:2048')
    g.i('s_mov_b32 exec_hi, 0')
    for r in range(9, 12):
        g.i('ds_write_b16 v19, v%d offset:%d' % (44 + r, 2048 + 512 * (r - 8)))
    g.i('s_mov_b32 exec_hi, -1')
    g.label('L_k1C_gather')
    g.i('s_waitcnt lgkmcnt(0)\ns_barrier')
    stamp(g, 4)
    g.i('''
    v_mov_b32 v40, s21                      ; channel byte for the address perm
    s_mov_b32 s40, 0x0c040100
    s_mov_b32 s41, 0x0c040302
    s_mul_i32 s42, s23, %d
    s_add_u32 s42, s42, %d
    v_lshlrev_b32 v6, 4, v3                 ; 16 * chunk
    ''' % (KRB, WS_KR))
    def gather_round(tb, vaddr, soff):
        for e in range(8):
            g.i('v_perm_b32 v%d, v40, v%d, %s' % (96 + e, tb + e // 2, 's40' if e % 2 == 0 else 's41'))
        g.i('v_perm_b32 v104, v40, v%d, s40' % (tb + 4))
        tk = [g.i('ds_read_u16 v%d, v%d' % (108 + e, 96 + e)) for e in range(9)]
        g.wait(tk[-1])
        for p in range(4):
            g.i('v_lshl_or_b32 v%d, v%d, 16, v%d' % (120 + p, 108 + 2 * p + 1, 108 + 2 * p))
            g.i('v_lshl_or_b32 v%d, v%d, 16, v%d' % (124 + p, 108 + 2 * p + 2, 108 + 2 * p + 1))
        g.i('s_add_u32 s43, s42, %d' % soff)
        g.i('buffer_store_dwordx4 v[120:123], %s, s[32:35], s43 offen' % vaddr)
        g.i('buffer_store_dwordx4 v[124:127], %s, s[32:35], s43 offen offset:%d' % (vaddr, 0))
    def gather_round2(tb, vaddr, soff):
        for e in range(8):
            g.i('v_perm_b32 v%d, v40, v%d, %s' % (96 + e, tb + e // 2, 's40' if e % 2 == 0 else 's41'))
        g.i('v_perm_b32 v104, v40, v%d, s40' % (tb + 4))
        tk = [g.i('ds_read_u16 v%d, v%d' % (108 + e, 96 + e)) for e in range(9)]
        g.wait(tk[-1])
        for p in range(4):
            g.i('v_lshl_or_b32 v%d, v%d, 16, v%d' % (120 + p, 108 + 2 * p + 1, 108 + 2 * p))
            g.i('v_lshl_or_b32 v%d, v%d, 16, v%d' % (124 + p, 108 + 2 * p + 2, 108 + 2 * p + 1))
        g.i('s_add_u32 s43, s42, %d\ns_add_u32 s44, s43, %d' % (soff, KRL * 2))
        g.i('buffer_store_dwordx4 v[120:123], %s, s[32:35], s43 offen' % vaddr)
        g.i('buffer_store_dwordx4 v[124:127], %s, s[32:35], s44 offen' % vaddr)
    g.wait(tt[0]); gather_round2(TB, 'v6', 0)
    g.wait(tt[1]); gather_round2(TB + 6, 'v6', 2048)
    g.wait(tt[2])
    g.i('s_cmp_eq_u32 s22, 0\ns_cbranch_scc1 L_k1C_end')
    g.i('v_cmp_gt_u32 vcc, 16, v1\ns_and_saveexec_b64 s[46:47], vcc\ns_cbranch_execz L_k1C_end')
    g.i('v_lshlrev_b32 v7, 4, v1')
    gather_round2(TB + 12, 'v7', 4096)
    g.label('L_k1C_end')
    stamp(g, 5)
    g.i('s_mov_b64 exec, -1') if STAMPS else None
    stamp_flush(g, 6, int(os.environ.get('K1C_WG', '17')) & 0xffff, 218)
    tl_exit(g, 0, 216)
    g.i('s_endpgm')

def k1(g):
    g.raw(kstart('k1_prep_kernel'))
    tl_entry(g)
    ht_start(g, 0, 200)
    g.i('''
    s_cmp_ge_u32 s2, %d
    s_cbranch_scc1 L_k1_exit
    s_cmp_lt_u32 s2, %d
    s_cbranch_scc1 L_k1_C
    s_cmp_lt_u32 s2, %d
    s_cbranch_scc1 L_k1_A
    ''' % (K1_GRID, K1_NC, K1_NC + K1_NA))
    if K1_CODEPF:
        g.i('s_cmp_eq_u32 s2, %d\ns_cbranch_scc1 L_k1_D' % (K1_GRID - 1))
    role_B(g)
    g.label('L_k1_A')
    role_A(g)
    g.label('L_k1_C')
    role_C(g)
    if K1_CODEPF:
        g.label('L_k1_D')
        g.i('''
        s_getpc_b64 s[4:5]
        L_k1D_pc:
        s_add_u32 s4, s4, L_text_pf_start-L_k1D_pc
        s_addc_u32 s5, s5, 0
        v_lshlrev_b32 v1, 7, v0
        s_mov_b32 s6, L_text_pf_end-L_text_pf_start-4
        ''')
        for k in range(4):
            g.i('v_min_u32 v2, s6, v1\nv_and_b32 v2, -4, v2\nglobal_load_dword v%d, v2, s[4:5]\nv_add_u32 v1, 32768, v1' % (4 + k))
        g.i('s_waitcnt vmcnt(0)')
    g.label('L_k1_exit')
    g.i('s_endpgm')
    tbl = gather_table()
    g.raw('.p2align 4\n.type K1_TBL,@object\nK1_TBL:')
    for i in range(0, len(tbl), 16):
        g.raw('.short ' + ','.join(str(x) for x in tbl[i:i + 16]))
    g.raw('.size K1_TBL, %d' % (2 * len(tbl)))
    g.raw('.p2align 2\nL_text_pf_start:')
```

```python
from glib import *
from layout import *
import numpy as np, os

LOG2E = 0x3fb8aa3b
INV2PI = 0x3e22f983

def f2u(x): return int(np.float32(x).view(np.uint32))

K1_NC, K1_NA, K1_NB = 288, 64, 108
K1_CODEPF = os.environ.get('CPF', '1') == '1'
K1_NP = int(os.environ.get('K1NP', '0'))
K1_GRID = K1_NC + K1_NA + K1_NB + 1 + K1_NP
K1_LDS = 75776
LN1_MIMIC = os.environ.get('LN1M', '0') == '1'

def bf16_round_int(l):
    u = np.float32(l).view(np.uint32)
    r = ((int(u) + 0x7FFF + ((int(u) >> 16) & 1)) >> 16) << 16
    return int(np.uint32(r).view(np.float32))

def gather_table():
    t = []
    for i in range(8 * 274):
        l = KC0 - i
        t.append(2 * bf16_round_int(l) if 0 <= l <= 2047 else 4600)
    return t

def ws_srd(g, s, ptr):
    g.i('s_mov_b32 %s, %s\ns_mov_b32 %s, %s\ns_mov_b32 %s, %d\ns_mov_b32 %s, 0x20000' % (sr(s), sr(ptr), sr(s + 1), sr(ptr + 1), sr(s + 2), WS_END, sr(s + 3)))

def srd(g, s, ptr, nbytes):
    g.i('s_mov_b32 %s, %s\ns_mov_b32 %s, %s\ns_mov_b32 %s, %d\ns_mov_b32 %s, 0x20000' % (sr(s), sr(ptr), sr(s + 1), sr(ptr + 1), sr(s + 2), nbytes, sr(s + 3)))

def rb_inplace(g, v, tmp=None):
    g.i('v_cvt_pk_bf16_f32 %s, %s, %s' % (vr(v), vr(v), vr(v)))
    g.i('v_lshlrev_b32 %s, 16, %s' % (vr(v), vr(v)))

def role_B(g):
    g.i('''
    s_load_dwordx2 s[4:5], s[0:1], %d
    s_load_dwordx2 s[6:7], s[0:1], %d
    s_load_dwordx2 s[8:9], s[0:1], %d
    s_sub_u32 s3, s2, %d
    s_mul_i32 s20, s3, 2428
    s_lshr_b32 s20, s20, 16          ; kq
    s_mul_i32 s21, s20, 27
    s_sub_u32 s21, s3, s21           ; cc
    v_lshrrev_b32 v1, 4, v0          ; rg
    v_and_b32 v2, 15, v0             ; cl
    s_mul_i32 s22, s20, 144
    v_add_u32 v3, s22, v1            ; row0
    s_movk_i32 s23, 6912
    v_mul_lo_u32 v4, v3, s23
    s_lshl_b32 s24, s21, 8
    v_lshl_add_u32 v5, v2, 4, s24
    v_add_u32 v4, v4, v5             ; w_mod byte offset
    v_lshlrev_b32 v3, 1, v3          ; c byte offset
    s_waitcnt lgkmcnt(0)
    ''' % (KA['c'], KA['wmod'], KA['ws'], 256))
    srd(g, 12, 4, 1152)
    srd(g, 16, 6, 576 * 6912)
    ws_srd(g, 24, 8)
    g.i('''
    s_cmp_ge_u32 s3, %d
    s_cbranch_scc1 L_k1B_noflag
    v_mov_b32 v8, 0
    v_lshlrev_b32 v9, 2, v0
    s_lshl_b32 s28, s3, 10
    s_add_u32 s28, s28, %d
    buffer_store_dword v8, v9, s[24:27], s28 offen
    L_k1B_noflag:
    ''' % (FLAG_BYTES // 1024, WS_FLAG))
    g.nvm -= 1; g.vm_done = g.nvm
    ct, wt = [], []
    for i in range(9):
        ct.append(g.i('buffer_load_ushort v%d, v3, s[12:15], 0 offen offset:%d' % (10 + i, 32 * i)))
    for i in range(9):
        g.i('s_mov_b32 s30, %d' % (110592 * i))
        wt.append(g.i('buffer_load_dwordx4 %s, v4, s[16:19], s30 offen' % vr(24 + 4 * i, 4)))
    for j in range(8): g.i('v_mov_b32 v%d, 0' % (64 + j))
    g.i('s_mov_b32 s31, 0x%x' % (LOG2E | 0x80000000))
    g.wait(ct[-1])
    for i in range(9):
        c = 10 + i
        g.i('v_lshlrev_b32 v%d, 16, v%d' % (c, c))
    for i in range(9): g.i('v_mul_f32 v%d, s31, v%d' % (72 + i, 10 + i))
    for i in range(9): g.i('v_exp_f32 v%d, v%d' % (72 + i, 72 + i))
    for i in range(9): g.i('v_add_f32 v%d, 1.0, v%d' % (72 + i, 72 + i))
    for i in range(9): g.i('v_rcp_f32 v%d, v%d' % (72 + i, 72 + i))
    for i in range(9): g.i('v_mul_f32 v%d, v%d, v%d' % (10 + i, 10 + i, 72 + i))
    for i in range(9): g.i('v_cvt_pk_bf16_f32 v%d, v%d, v%d' % (10 + i, 10 + i, 10 + i))
    for i in range(9): g.i('v_lshlrev_b32 v%d, 16, v%d' % (10 + i, 10 + i))
    g.i('s_mov_b32 s32, 0xffff0000')
    for i in range(9):
        g.wait(wt[i])
        for j in range(4):
            w = 24 + 4 * i + j
            g.i('v_lshlrev_b32 v82, 16, v%d\nv_and_b32 v83, s32, v%d' % (w, w))
            g.i('v_fmac_f32 v%d, v82, v%d\nv_fmac_f32 v%d, v83, v%d' % (64 + 2 * j, 10 + i, 65 + 2 * j, 10 + i))
    g.i('v_lshlrev_b32 v6, 9, v1\nv_lshl_add_u32 v6, v2, 5, v6')
    g.i('ds_write_b128 v6, v[64:67]\nds_write_b128 v6, v[68:71] offset:16')
    g.i('s_waitcnt lgkmcnt(0)\ns_barrier')
    g.i('v_cmp_gt_u32 vcc, 128, v0\ns_and_saveexec_b64 s[34:35], vcc\ns_cbranch_execz L_k1B_end')
    g.i('v_lshlrev_b32 v7, 2, v0')
    toks = [g.i('ds_read_b32 v%d, v7 offset:%d' % (24 + r, 512 * r)) for r in range(16)]
    g.wait(toks[-1])
    for st in (8, 4, 2, 1):
        for r in range(st): g.i('v_add_f32 v%d, v%d, v%d' % (24 + r, 24 + r, 24 + r + st))
    g.i('''
    s_mul_i32 s33, s20, 13824
    s_lshl_b32 s36, s21, 9
    s_add_u32 s33, s33, s36
    buffer_store_dword v24, v7, s[24:27], s33 offen
    L_k1B_end:
    ''')
    tl_exit(g, 0, 200)
    g.i('s_endpgm')

def role_A(g):
    RS = 1184
    RAW, FP = 16, 56
    g.i('''
    s_load_dwordx2 s[4:5], s[0:1], %d
    s_load_dwordx2 s[8:9], s[0:1], %d
    s_sub_u32 s3, s2, %d              ; tb
    s_setprio 3
    v_lshrrev_b32 v1, 3, v0           ; row
    v_and_b32 v2, 7, v0               ; sub
    s_lshl_b32 s20, s3, 5
    v_add_u32 v3, s20, v1
    s_movk_i32 s21, 1152
    v_mul_lo_u32 v3, v3, s21
    v_lshl_add_u32 v3, v2, 4, v3      ; global byte offset
    s_movk_i32 s21, %d
    v_mul_lo_u32 v4, v1, s21
    v_lshl_add_u32 v4, v2, 4, v4      ; LDS write address
    s_waitcnt lgkmcnt(0)
    ''' % (KA['x'], KA['ws'], 0, RS))
    srd(g, 12, 4, XBYTES)
    ws_srd(g, 24, 8)
    stamp(g, 0)
    lt = [g.i('buffer_load_dwordx4 %s, v3, s[12:15], 0 offen offset:%d' % (vr(RAW + 4 * i, 4), 128 * i)) for i in range(9)]
    g.i('s_mov_b32 s32, 0xffff0000\nv_mov_b32 v6, 0\nv_mov_b32 v7, 0')
    for i in range(9):
        g.wait(lt[i])
        g.i('ds_write_b128 v4, %s offset:%d' % (vr(RAW + 4 * i, 4), 128 * i))
        for j in range(4):
            w = RAW + 4 * i + j; f = FP + 8 * i + 2 * j
            g.i('v_lshlrev_b32 v%d, 16, v%d\nv_and_b32 v%d, s32, v%d' % (f, w, f + 1, w))
        for j in range(4):
            f = FP + 8 * i + 2 * j
            g.i('v_pk_add_f32 v[6:7], v[6:7], %s' % vr(f, 2))
    def red8(v):
        g.i('v_add_f32_dpp %s, %s, %s quad_perm:[1,0,3,2] row_mask:0xf bank_mask:0xf' % (v, v, v))
        g.i('v_add_f32_dpp %s, %s, %s quad_perm:[2,3,0,1] row_mask:0xf bank_mask:0xf' % (v, v, v))
        g.i('v_add_f32_dpp %s, %s, %s row_half_mirror row_mask:0xf bank_mask:0xf' % (v, v, v))
    stamp(g, 1)
    g.i('v_add_f32 v6, v6, v7')
    red8('v6')
    g.i('s_mov_b32 s33, 0x%x' % f2u(1.0 / 576))
    g.i('v_mul_f32 v8, s33, v6        ; mean')
    g.i('v_sub_f32 v10, 0, v8\nv_sub_f32 v11, 0, v8\nv_mov_b32 v6, 0\nv_mov_b32 v7, 0')
    for i in range(36):
        f = FP + 2 * i
        t = 128 + 2 * (i % 4)
        g.i('v_pk_add_f32 %s, %s, v[10:11]' % (vr(t, 2), vr(f, 2)))
        g.i('v_pk_fma_f32 v[6:7], %s, %s, v[6:7]' % (vr(t, 2), vr(t, 2)))
    g.i('v_add_f32 v6, v6, v7')
    red8('v6')
    g.i('v_mul_f32 v6, s33, v6        ; var')
    rb_inplace(g, 6)
    g.i('v_add_f32 v6, 0x%x, v6' % f2u(1e-5))
    rb_inplace(g, 6)
    g.i('v_sqrt_f32 v6, v6')
    rb_inplace(g, 6)
    g.i('v_rcp_f32 v12, v6')
    rb_inplace(g, 8)
    g.i('v_sub_f32 v10, 0, v8\nv_sub_f32 v11, 0, v8\nv_mov_b32 v13, v12')
    if LN1_MIMIC:
        for i in range(36):
            f = FP + 2 * i
            g.i('v_pk_add_f32 %s, %s, v[10:11]' % (vr(f, 2), vr(f, 2)))
        for i in range(36):
            f = FP + 2 * i
            g.i('v_cvt_pk_bf16_f32 v%d, v%d, v%d' % (RAW + i, f, f + 1))
        for i in range(36):
            f = FP + 2 * i; w = RAW + i
            g.i('v_lshlrev_b32 v%d, 16, v%d\nv_and_b32 v%d, s32, v%d' % (f, w, f + 1, w))
        for i in range(36):
            f = FP + 2 * i
            g.i('v_pk_mul_f32 %s, %s, v[12:13]' % (vr(f, 2), vr(f, 2)))
    else:
        g.i('v_mul_f32 v10, v10, v12\nv_mul_f32 v11, v11, v13')
        for i in range(36):
            f = FP + 2 * i
            g.i('v_pk_fma_f32 %s, %s, v[12:13], v[10:11]' % (vr(f, 2), vr(f, 2)))
    for i in range(36):
        f = FP + 2 * i
        g.i('v_cvt_pk_bf16_f32 v%d, v%d, v%d' % (RAW + i, f, f + 1))
        if i % 4 == 3:
            g.i('ds_write_b128 v4, %s offset:%d' % (vr(RAW + i - 3, 4), 37888 + 128 * (i // 4)))
    stamp(g, 2)
    g.i('''
    v_and_b32 v1, 63, v0
    v_lshrrev_b32 v2, 6, v0           ; wave
    v_and_b32 v3, 15, v1              ; i
    v_lshrrev_b32 v5, 4, v1           ; q
    v_lshrrev_b32 v6, 2, v3
    v_lshl_add_u32 v6, v5, 3, v6      ; row = 8q + (i>>2)
    s_movk_i32 s21, %d
    v_mul_lo_u32 v6, v6, s21
    v_and_b32 v7, 3, v3
    v_lshl_add_u32 v6, v7, 3, v6
    v_lshl_add_u32 v6, v2, 5, v6      ; + wave*32 bytes (d tile = wave + 4k)
    v_lshlrev_b32 v7, 6, v3
    v_lshl_add_u32 v7, v5, 4, v7
    v_lshl_add_u32 v7, v2, 10, v7     ; store offset: wave*1024 + i*64 + q*16
    s_mul_i32 s22, s3, 36864
    s_waitcnt lgkmcnt(0)
    s_barrier
    ''' % RS)
    stamp(g, 3)
    for arr, (lo, wo) in enumerate(((0, WS_XT), (37888, WS_XNT))):
        toks = []
        for k in range(9):
            r = 16 + 4 * k + 40 * arr
            g.i('ds_read_b64_tr_b16 %s, v6 offset:%d' % (vr(r, 2), lo + 128 * k))
            toks.append(g.i('ds_read_b64_tr_b16 %s, v6 offset:%d' % (vr(r + 2, 2), lo + 128 * k + 4 * RS)))
        for k in range(9):
            r = 16 + 4 * k + 40 * arr
            g.i('s_add_u32 s23, s22, %d' % (wo + 4096 * k))
            g.wait(toks[k])
            g.i('buffer_store_dwordx4 %s, v7, s[24:27], s23 offen' % vr(r, 4))
    stamp(g, 4)
    stamp_flush(g, 5, int(os.environ.get('K1A_WG', '-1')) & 0xffff, 204)
    tl_exit(g, 0, 200)
    g.i('s_endpgm')

def role_C(g):
    UOFF = [4608, 34176]; VOFF_REL = 24 * 528; RS = 528
    g.i('''
    s_load_dwordx4 s[4:7], s[0:1], %d       ; are, aim
    s_load_dwordx4 s[8:11], s[0:1], %d      ; bre, bim
    s_load_dwordx4 s[12:15], s[0:1], %d     ; cre, cim
    s_load_dwordx2 s[16:17], s[0:1], %d     ; log_dt
    s_load_dwordx2 s[18:19], s[0:1], %d     ; ws
    v_lshrrev_b32 v2, 6, v0
    v_and_b32 v1, 63, v0                    ; lane
    s_nop 0
    v_readfirstlane_b32 s20, v2             ; wave
    s_nop 3
    s_lshr_b32 s21, s20, 1                  ; channel in WG
    s_and_b32 s22, s20, 1                   ; mode half
    s_lshl_b32 s23, s3, 1
    s_add_u32 s23, s23, s21                 ; d
    s_lshl_b32 s24, s22, 6
    v_add_u32 v3, s24, v1                   ; n (also gather chunk index within the round)
    s_lshl_b32 s25, s23, 8
    v_lshl_add_u32 v4, v3, 1, s25           ; byte offset in [576][128] bf16
    s_lshl_b32 s26, s23, 1
    v_mov_b32 v5, s26
    s_getpc_b64 s[28:29]
    L_k1C_pc:
    s_add_u32 s28, s28, K1_TBL-L_k1C_pc
    s_addc_u32 s29, s29, 0
    s_waitcnt lgkmcnt(0)
    ''' % (KA['are'], KA['bre'], KA['cre'], KA['ldt'], KA['ws']))
    stamp(g, 0)
    t = []
    for k, b in enumerate((4, 6, 8, 10, 12, 14)):
        t.append(g.i('global_load_ushort v%d, v4, %s' % (10 + k, sr(b, 2))))
    t.append(g.i('global_load_ushort v16, v5, s[16:17]'))
    g.i('v_lshlrev_b32 v6, 4, v3\nv_lshlrev_b32 v7, 4, v1\nv_min_u32 v7, 256, v7')
    TB = 200
    tt = []
    tt.append(g.i('global_load_dwordx4 %s, v6, s[28:29]\nglobal_load_ushort v%d, v6, s[28:29] offset:16' % (vr(TB, 4), TB + 4)))
    tt.append(g.i('global_load_dwordx4 %s, v6, s[28:29] offset:2048\nglobal_load_ushort v%d, v6, s[28:29] offset:2064' % (vr(TB + 6, 4), TB + 10)))
    g.i('v_add_u32 v7, 4096, v7')
    tt.append(g.i('global_load_dwordx4 %s, v7, s[28:29]\nglobal_load_ushort v%d, v7, s[28:29] offset:16' % (vr(TB + 12, 4), TB + 16)))
    ws_srd(g, 32, 18)
    g.i('s_mul_i32 s30, s21, %d\ns_add_u32 s30, s30, %d' % (UOFF[1] - UOFF[0], UOFF[0]))
    g.i('v_lshl_add_u32 v8, v3, 2, s30')
    g.i('s_mov_b32 s31, 0x%x\ns_mov_b32 s36, 0x%x' % (LOG2E, INV2PI))
    g.wait(t[-1])
    stamp(g, 1)
    for k in range(7): g.i('v_lshlrev_b32 v%d, 16, v%d' % (10 + k, 10 + k))
    g.i('v_mul_f32 v16, s31, v16\nv_exp_f32 v16, v16')
    rb_inplace(g, 16)
    g.i('''
    v_mul_f32 v10, v16, v10                 ; zre
    v_mul_f32 v11, v16, v11                 ; zim
    v_mul_f32 v12, v16, v12
    v_mul_f32 v13, v16, v13
    v_mul_f32 v20, v14, v12
    v_mul_f32 v21, v14, v13
    v_fma_f32 v20, -v15, v13, v20
    v_fma_f32 v21, v15, v12, v21
    v_mul_f32 v10, s31, v10
    v_mul_f32 v11, s36, v11
    ''')
    def cexp(dst, scale):
        if scale != 1:
            g.i('v_mul_f32 v17, 0x%x, v10\nv_mul_f32 v18, 0x%x, v11' % (f2u(scale), f2u(scale)))
        else:
            g.i('v_mov_b32 v17, v10\nv_mov_b32 v18, v11')
        g.i('v_rndne_f32 v19, v18\nv_exp_f32 v17, v17\nv_sub_f32 v18, v18, v19')
        g.i('v_cos_f32 v%d, v18\nv_sin_f32 v%d, v18' % (dst, dst + 1))
        g.i('v_mul_f32 v%d, v17, v%d\nv_mul_f32 v%d, v17, v%d' % (dst, dst, dst + 1, dst + 1))
    neg = {}
    def prep(b, t):
        g.i('v_sub_f32 v%d, 0, v%d\nv_mov_b32 v%d, v%d' % (t, b + 1, t + 1, b + 1))
        neg[b] = t
    def cmul(d, a, b):
        g.i('v_pk_mul_f32 %s, %s, %s op_sel:[0,0] op_sel_hi:[1,0]' % (vr(d, 2), vr(a, 2), vr(b, 2)))
        g.i('v_pk_fma_f32 %s, %s, %s, %s op_sel:[1,0,0] op_sel_hi:[0,1,1]' % (vr(d, 2), vr(a, 2), vr(neg[b], 2), vr(d, 2)))
    pk = [0]
    def putU(row, a):
        p = 60 + pk[0] % 8; pk[0] += 1
        g.i('v_cvt_pk_bf16_f32 v%d, v%d, -v%d' % (p, a, a + 1))
        g.i('ds_write_b32 v8, v%d offset:%d' % (p, row * RS))
    def putV(row, a):
        p = 60 + pk[0] % 8; pk[0] += 1
        g.i('v_cvt_pk_bf16_f32 v%d, v%d, v%d' % (p, a, a + 1))
        g.i('ds_write_b32 v8, v%d offset:%d' % (p, VOFF_REL + row * RS))
    Z, W256, W2, W4, W8 = 22, 24, 26, 28, 30
    cexp(Z, 1); cexp(W256, 256.0)
    prep(Z, 44); prep(W256, 46)
    cmul(W2, Z, Z); prep(W2, 48); cmul(W4, W2, W2); prep(W4, 50); cmul(W8, W4, W4); prep(W8, 52)
    CB = 20
    putU(0, CB)
    x, y = 32, 34
    cur = CB
    for i in range(1, 8):
        nxt = x if cur != x else y
        cmul(nxt, cur, Z); putU(i, nxt); cur = nxt
    A, B = 36, 38
    cmul(A, CB, W256); putU(8, A)
    cur = A
    for i in range(1, 4):
        nxt = x if cur != x else y
        cmul(nxt, cur, W2); putU(8 + i, nxt); cur = nxt
    cmul(B, A, W256); putU(12, B); cmul(x, B, W4); putU(13, x)
    cmul(A, B, W256); putU(14, A); cmul(x, A, W4); putU(15, x)
    cur = A
    for i in range(5):
        nxt = B if cur == A else A
        cmul(nxt, cur, W256); putU(16 + i, nxt); cur = nxt
    g.i('v_mov_b32 v%d, 1.0\nv_mov_b32 v%d, 0' % (x, x + 1))
    putV(0, x); putV(1, W8)
    cur = W8
    for j in range(2, 32):
        nxt = x if cur != x else y
        cmul(nxt, cur, W8); putV(j, nxt); cur = nxt
    stamp(g, 2)
    g.i('s_waitcnt lgkmcnt(0)\ns_barrier')
    stamp(g, 3)
    g.i('s_cmp_lg_u32 s22, 0\ns_cbranch_scc1 L_k1C_gather')
    g.i('''
    v_and_b32 v9, 31, v1                    ; row / column index
    v_lshrrev_b32 v17, 5, v1                ; half
    s_movk_i32 s37, %d
    v_mul_lo_u32 v18, v9, s37
    v_lshl_add_u32 v18, v17, 4, v18
    v_add_u32 v18, s30, v18
    ''' % RS)
    ACC = 64
    fr = []
    for ks in range(16):
        ra = 96 + 8 * (ks % 8)
        if ks >= 8: pass
        g.i('ds_read_b128 %s, v18 offset:%d' % (vr(ra, 4), 32 * ks))
        fr.append(g.i('ds_read_b128 %s, v18 offset:%d' % (vr(ra + 4, 4), VOFF_REL + 32 * ks)))
        if ks >= 7 or ks == 15:
            k0 = ks - 7
            g.wait(fr[k0])
            r0 = 96 + 8 * (k0 % 8)
            g.i('v_mfma_f32_32x32x16_bf16 %s, %s, %s, %s' % (vr(ACC, 16), vr(r0, 4), vr(r0 + 4, 4), '0' if k0 == 0 else vr(ACC, 16)))
    for k0 in range(9, 16):
        g.wait(fr[k0])
        r0 = 96 + 8 * (k0 % 8)
        g.i('v_mfma_f32_32x32x16_bf16 %s, %s, %s, %s' % (vr(ACC, 16), vr(r0, 4), vr(r0 + 4, 4), vr(ACC, 16)))
    g.i('''
    s_lshl_b32 s38, s21, 16
    v_lshl_add_u32 v19, v9, 4, s38          ; Kf + 16 j
    v_lshl_add_u32 v40, v17, 3, v19         ; + 8h
    v_mov_b32 v41, 0
    v_mov_b32 v42, s38
    ds_write_b16 v42, v41 offset:4600
    ''')
    for r in range(12):
        g.i('v_cvt_pk_bf16_f32 v%d, v%d, v%d' % (44 + r, ACC + r, ACC + r))
    for r in range(4):
        g.i('ds_write_b16 v40, v%d offset:%d' % (44 + r, 2 * r))
    for r, delta in zip(range(4, 8), (512, 516, 1016, 1020)):
        g.i('s_movk_i32 s39, %d\nv_mad_u32_u24 v43, v17, s39, v19' % delta)
        g.i('ds_write_b16 v43, v%d offset:%d' % (44 + r, 512 + 4 * (r - 4)))
    g.i('s_movk_i32 s39, 2048\nv_mad_u32_u24 v43, v17, s39, v19')
    g.i('ds_write_b16 v43, v52 offset:2048')
    g.i('s_mov_b32 exec_hi, 0')
    for r in range(9, 12):
        g.i('ds_write_b16 v19, v%d offset:%d' % (44 + r, 2048 + 512 * (r - 8)))
    g.i('s_mov_b32 exec_hi, -1')
    g.label('L_k1C_gather')
    g.i('s_waitcnt lgkmcnt(0)\ns_barrier')
    stamp(g, 4)
    g.i('''
    v_mov_b32 v40, s21                      ; channel byte for the address perm
    s_mov_b32 s40, 0x0c040100
    s_mov_b32 s41, 0x0c040302
    s_mul_i32 s42, s23, %d
    s_add_u32 s42, s42, %d
    v_lshlrev_b32 v6, 4, v3                 ; 16 * chunk
    ''' % (KRB, WS_KR))
    def gather_round(tb, vaddr, soff):
        for e in range(8):
            g.i('v_perm_b32 v%d, v40, v%d, %s' % (96 + e, tb + e // 2, 's40' if e % 2 == 0 else 's41'))
        g.i('v_perm_b32 v104, v40, v%d, s40' % (tb + 4))
        tk = [g.i('ds_read_u16 v%d, v%d' % (108 + e, 96 + e)) for e in range(9)]
        g.wait(tk[-1])
        for p in range(4):
            g.i('v_lshl_or_b32 v%d, v%d, 16, v%d' % (120 + p, 108 + 2 * p + 1, 108 + 2 * p))
            g.i('v_lshl_or_b32 v%d, v%d, 16, v%d' % (124 + p, 108 + 2 * p + 2, 108 + 2 * p + 1))
        g.i('s_add_u32 s43, s42, %d' % soff)
        g.i('buffer_store_dwordx4 v[120:123], %s, s[32:35], s43 offen' % vaddr)
        g.i('buffer_store_dwordx4 v[124:127], %s, s[32:35], s43 offen offset:%d' % (vaddr, 0))
    def gather_round2(tb, vaddr, soff):
        for e in range(8):
            g.i('v_perm_b32 v%d, v40, v%d, %s' % (96 + e, tb + e // 2, 's40' if e % 2 == 0 else 's41'))
        g.i('v_perm_b32 v104, v40, v%d, s40' % (tb + 4))
        tk = [g.i('ds_read_u16 v%d, v%d' % (108 + e, 96 + e)) for e in range(9)]
        g.wait(tk[-1])
        for p in range(4):
            g.i('v_lshl_or_b32 v%d, v%d, 16, v%d' % (120 + p, 108 + 2 * p + 1, 108 + 2 * p))
            g.i('v_lshl_or_b32 v%d, v%d, 16, v%d' % (124 + p, 108 + 2 * p + 2, 108 + 2 * p + 1))
        g.i('s_add_u32 s43, s42, %d\ns_add_u32 s44, s43, %d' % (soff, KRL * 2))
        g.i('buffer_store_dwordx4 v[120:123], %s, s[32:35], s43 offen' % vaddr)
        g.i('buffer_store_dwordx4 v[124:127], %s, s[32:35], s44 offen' % vaddr)
    g.wait(tt[0]); gather_round2(TB, 'v6', 0)
    g.wait(tt[1]); gather_round2(TB + 6, 'v6', 2048)
    g.wait(tt[2])
    g.i('s_cmp_eq_u32 s22, 0\ns_cbranch_scc1 L_k1C_end')
    g.i('v_cmp_gt_u32 vcc, 16, v1\ns_and_saveexec_b64 s[46:47], vcc\ns_cbranch_execz L_k1C_end')
    g.i('v_lshlrev_b32 v7, 4, v1')
    gather_round2(TB + 12, 'v7', 4096)
    g.label('L_k1C_end')
    stamp(g, 5)
    g.i('s_mov_b64 exec, -1') if STAMPS else None
    stamp_flush(g, 6, int(os.environ.get('K1C_WG', '17')) & 0xffff, 218)
    tl_exit(g, 0, 216)
    g.i('s_endpgm')

def k1(g):
    g.raw(kstart('k1_prep_kernel'))
    tl_entry(g)
    ht_start(g, 0, 200)
    g.i('''
    s_cmp_ge_u32 s2, %d
    s_cbranch_scc1 L_k1_exit
    s_cmp_lt_u32 s2, 64
    s_cbranch_scc1 L_k1_A
    s_sub_u32 s3, s2, 64
    s_cmp_lt_u32 s2, 256
    s_cbranch_scc1 L_k1_C
    s_sub_u32 s3, s2, 172
    s_cmp_ge_u32 s2, 461
    s_cbranch_scc1 L_k1_E
    s_cmp_eq_u32 s2, 460
    s_cbranch_scc1 L_k1_D
    s_cmp_ge_u32 s2, 364
    s_cbranch_scc1 L_k1_C
    ''' % (K1_GRID,))
    role_B(g)
    g.label('L_k1_A')
    role_A(g)
    g.label('L_k1_C')
    role_C(g)
    if True:
        g.label('L_k1_D')
        g.i('''
        s_getpc_b64 s[4:5]
        L_k1D_pc:
        s_add_u32 s4, s4, L_text_pf_start-L_k1D_pc
        s_addc_u32 s5, s5, 0
        v_lshlrev_b32 v1, 7, v0
        s_mov_b32 s6, L_text_pf_end-L_text_pf_start-4
        ''')
        for k in range(4):
            g.i('v_min_u32 v2, s6, v1\nv_and_b32 v2, -4, v2\nglobal_load_dword v%d, v2, s[4:5]\nv_add_u32 v1, 32768, v1' % (4 + k))
        g.i('s_waitcnt vmcnt(0)\ns_endpgm')
    g.label('L_k1_E')
    if K1_NP:
        nth = K1_NP * 256
        per = -(-(F * D * 2 // 128) // nth)
        g.i('''
        s_load_dwordx4 s[4:7], s[0:1], %d
        s_sub_u32 s3, s2, 461
        s_lshl_b32 s3, s3, 8
        v_add_u32 v1, s3, v0
        v_lshlrev_b32 v1, 7, v1
        s_waitcnt lgkmcnt(0)
        ''' % KA['wg'])
        srd(g, 8, 4, F * D * 2); srd(g, 12, 6, F * D * 2)
        for k in range(per):
            g.i('buffer_load_dword v%d, v1, s[8:11], 0 offen\nbuffer_load_dword v%d, v1, s[12:15], 0 offen' % (4 + 2 * k, 5 + 2 * k))
            g.i('v_add_u32 v1, %d, v1' % (nth * 128))
        g.i('s_waitcnt vmcnt(0)')
    g.label('L_k1_exit')
    g.i('s_endpgm')
    tbl = gather_table()
    g.raw('.p2align 4\n.type K1_TBL,@object\nK1_TBL:')
    for i in range(0, len(tbl), 16):
        g.raw('.short ' + ','.join(str(x) for x in tbl[i:i + 16]))
    g.raw('.size K1_TBL, %d' % (2 * len(tbl)))
    g.raw('.p2align 2\nL_text_pf_start:')
```

```python
L = 2048; D = 576; N = 128; F = 4608
XBYTES = L * D * 2
WS_MODP = 0
WS_MODF = 57344
WS_XT = 65536
WS_XNT = WS_XT + XBYTES
KRL = 2176
KRB = 2 * KRL * 2
KC0 = 2080
WS_KR = WS_XNT + XBYTES
WS_X1T = WS_KR + D * KRB
WS_X1R = WS_X1T + XBYTES
WS_ACT = WS_X1R + XBYTES
WS_PART = WS_ACT + L * F * 2
WS_WDP = WS_PART + 4 * XBYTES
WS_FLAG = WS_WDP + F * D * 2
FLAG_BYTES = 128 * 128
WS_FLAG1 = WS_FLAG + 64 * 128
WS_END = WS_FLAG + FLAG_BYTES
KA = dict(x=0, are=8, aim=16, bre=24, bim=32, cre=40, cim=48, ldt=56, dskip=64, bx=72, wg=80, wu=88, wd=96, c=104, wmod=112, out=120, dbg=128, ws=136)
if __name__ == '__main__':
    for k, v in list(globals().items()):
        if k.startswith('WS_'): print(k, v, hex(v))
```

```python
import sys, os, re, importlib
sys.path.insert(0, 'dev')
from glib import *
from layout import *
import k1

HDR = open('adaLN_cond__ssm_conv_s4__geglu_ffn__prompt.s.ref').read().split('; Override')[0]

def build(kernels, out):
    launches, bodies, descs = [], [], []
    for (name, grid, lds, fn, vg, acc) in kernels:
        launches.append('; @launch kernel=%s grid=(%d,1,1) block=(256,1,1) lds=%d' % (name, grid, lds))
        g = G(); fn(g)
        body = g.finalize()
        sc = os.environ.get('SC1', 'k1,k2,k3,k4')
        if name[:2] in sc.split(','):
            out_lines = []
            for line in body.split('\n'):
                t = line.split(';')[0].rstrip()
                if re.match(r'\s*buffer_store_dwordx[24]\b', t) and ' sc1' not in t:
                    line = t + ' sc1'
                out_lines.append(line)
            body = '\n'.join(out_lines)
        bodies.append(body)
        descs.append(kdesc(name, vg, acc))
        print('%s: %d items, %d nops' % (name, len(g.items), g.nnop), file=sys.stderr)
    s = HDR + '\n'.join(launches) + '\n.amdgcn_target "amdgcn-amd-amdhsa--gfx950"\n.text\n' + '\n'.join(bodies) + 'L_text_pf_end:\n'
    s += '.section .rodata,"a"\n.p2align 6\n' + '.p2align 6\n'.join(descs)
    open(out, 'w').write(s)
    print('wrote', out, len(s), 'bytes', file=sys.stderr)

def kernels():
    ks = [] if os.environ.get('FRONT', 'k12') == 'k12' else [('k1_prep_kernel', k1.K1_GRID, k1.K1_LDS, k1.k1, 224, 224)]
    for modname in os.environ.get('KLIST', 'k12,k34').split(','):
        try:
            m = importlib.import_module(modname)
        except ModuleNotFoundError:
            continue
        ks.append(m.KERNEL)
    return ks

if __name__ == '__main__':
    out = sys.argv[1] if len(sys.argv) > 1 else 'full.s'
    build(kernels(), out)
```

```python
import re

REG_RE = re.compile(r'^(-|abs\()?([vsa])(\d+)\)?$')
RNG_RE = re.compile(r'^(-|abs\()?([vsa])\[(\d+):(\d+)\]\)?$')


def regs_of(op):
    op = op.strip()
    m = REG_RE.match(op)
    if m:
        return {(m.group(2), int(m.group(3)))}
    m = RNG_RE.match(op)
    if m:
        return {(m.group(2), i) for i in range(int(m.group(3)), int(m.group(4)) + 1)}
    if op == 'vcc':
        return {('s', 'vcc')}
    if op == 'exec':
        return {('s', 'exec')}
    if op == 'm0':
        return {('s', 'm0')}
    return set()


def split_ops(s):
    out, depth, cur = [], 0, ''
    for ch in s:
        if ch in '[(':
            depth += 1
        if ch in '])':
            depth -= 1
        if ch == ',' and depth == 0:
            out.append(cur.strip())
            cur = ''
        else:
            cur += ch
    if cur.strip():
        out.append(cur.strip())
    return out


TRANS = ('v_exp_f32', 'v_log_f32', 'v_rcp_f32', 'v_rsq_f32', 'v_sqrt_f32', 'v_sin_f32', 'v_cos_f32')


class Ins:
    __slots__ = ('text', 'mn', 'kind', 'dst', 'src', 'passes', 'trans', 'dpp', 'wide_store', 'lds_dma', 'nstates')

    def __init__(self, text):
        self.text = text
        t = text.split(';')[0].strip()
        parts = t.split(None, 1)
        self.mn = mn = parts[0]
        rest = parts[1] if len(parts) > 1 else ''
        ops = split_ops(rest)
        mods = ''
        if ops:
            last = ops[-1].split()
            if len(last) > 1:
                ops[-1] = last[0]
                mods = ' '.join(last[1:])
        self.dst, self.src = set(), set()
        self.passes = 0
        self.trans = False
        self.dpp = False
        self.wide_store = False
        self.lds_dma = False
        self.nstates = 1
        R = [regs_of(o) for o in ops]
        if mn.startswith('v_mfma'):
            self.kind = 'mfma'
            self.dst = R[0]
            self.src = R[1] | R[2] | R[3]
            self.passes = 8 if '32x32' in mn else 4
            if 'x2_f32' in mn or 'x1_' in mn:
                self.passes = 16
        elif mn.startswith('v_'):
            self.kind = 'valu'
            base = mn.replace('_e32', '').replace('_e64', '').replace('_dpp', '').replace('_sdwa', '')
            self.trans = base in TRANS
            self.dpp = ('row_' in mods or 'quad_perm' in mods or 'wave_' in mods or mn.endswith('_dpp'))
            if base.startswith('v_cmp'):
                self.dst = R[0]
                self.src = set().union(*R[1:])
                if base.startswith('v_cmpx'):
                    self.dst = self.dst | {('s', 'exec')}
            elif base.startswith('v_permlane') and 'swap' in base:
                self.dst = R[0] | R[1]
                self.src = R[0] | R[1]
            elif base in ('v_add_co_u32', 'v_sub_co_u32', 'v_addc_co_u32', 'v_subb_co_u32'):
                self.dst = R[0] | R[1]
                self.src = set().union(*R[2:])
            elif base in ('v_fmac_f32', 'v_dot2c_f32_bf16', 'v_writelane_b32'):
                self.dst = R[0]
                self.src = set().union(*R)
            else:
                self.dst = R[0]
                self.src = set().union(*R[1:]) if len(R) > 1 else set()
                if base.startswith('v_cndmask') and len(R) == 3:
                    self.src |= {('s', 'vcc')}
        elif mn.startswith('ds_'):
            self.kind = 'ds'
            if mn.startswith('ds_read') or mn.startswith('ds_bpermute') or mn.startswith('ds_swizzle') or mn.startswith('ds_permute'):
                self.dst = R[0]
                self.src = set().union(*R[1:])
            else:
                self.src = set().union(*R)
        elif mn.startswith('buffer_') or mn.startswith('global_'):
            self.kind = 'vmem'
            allm = mods + ' ' + rest
            if mn in ('buffer_wbl2', 'buffer_inv'):
                pass
            elif mn.startswith('global_load_lds') or (mn.startswith('buffer_load') and re.search(r'\blds\b', allm)):
                self.lds_dma = True
                self.src = set().union(*R) | {('s', 'm0')}
            elif '_load' in mn:
                self.dst = R[0]
                self.src = set().union(*R[1:])
            elif '_store' in mn:
                self.src = set().union(*R)
                self.wide_store = mn.endswith('x4') or mn.endswith('x3')
                if self.wide_store:
                    self.dst = set()
            elif '_atomic' in mn:
                self.src = set().union(*R)
                if 'sc0' in allm:
                    self.dst = R[0]
        elif mn == 's_nop':
            self.kind = 'nop'
            self.nstates = int(ops[0], 0) + 1
        elif mn in ('s_waitcnt', 's_barrier', 's_endpgm', 's_setprio', 's_sleep'):
            self.kind = 'ctl'
        elif mn.startswith('s_cbranch') or mn == 's_branch':
            self.kind = 'br'
        elif mn.startswith('s_load') or mn.startswith('s_buffer_load') or mn in ('s_memtime', 's_memrealtime'):
            self.kind = 'smem'
            self.dst = R[0]
            self.src = set().union(*R[1:]) if len(R) > 1 else set()
        elif mn.startswith('s_'):
            self.kind = 'salu'
            if mn.startswith('s_cmp') or mn.startswith('s_bitcmp'):
                self.src = set().union(*R)
            elif 'saveexec' in mn:
                self.dst = R[0] | {('s', 'exec')}
                self.src = set().union(*R[1:]) | {('s', 'exec')}
            else:
                self.dst = R[0] if R else set()
                self.src = set().union(*R[1:]) if len(R) > 1 else set()
        else:
            raise ValueError('unknown instruction ' + text)

    def store_data(self):
        t = self.text.split(';')[0].strip()
        ops = split_ops(t.split(None, 1)[1])
        if self.mn.startswith('buffer_'):
            return regs_of(ops[0])
        return regs_of(ops[1].split()[0])


def need_states(p, c):
    n = 0
    vdst = {r for r in p.dst if r[0] in 'va'}
    sdst = {r for r in p.dst if r[0] == 's'}
    if p.kind == 'valu':
        if c.kind == 'mfma' and vdst & c.src:
            n = max(n, 2)
        if c.kind == 'mfma' and ('s', 'exec') in sdst:
            n = max(n, 4)
        if c.kind == 'valu':
            if c.dpp and vdst & c.src:
                n = max(n, 2)
            if c.dpp and ('s', 'exec') in sdst:
                n = max(n, 5)
            if c.mn.startswith('v_permlane') and vdst & c.src:
                n = max(n, 2)
            if (c.mn.startswith('v_readlane') or c.mn.startswith('v_readfirstlane')) and vdst & c.src:
                n = max(n, 1)
            if (c.mn.startswith('v_readlane') or c.mn.startswith('v_writelane')) and sdst & c.src:
                n = max(n, 4)
            if sdst & c.src:
                n = max(n, 2)
            if p.trans and not c.trans and vdst & c.src:
                n = max(n, 1)
            if p.trans and c.trans and vdst & c.src:
                n = max(n, 1)
        if p.mn.startswith('v_dot') and vdst & (c.src | c.dst):
            ok = False
            if c.mn == p.mn:
                ops = split_ops(c.text.split(';')[0].split(None, 1)[1])
                ab = regs_of(ops[1]) | regs_of(ops[2])
                ok = not (vdst & ab)
            if not ok:
                n = max(n, 3)
        if c.kind == 'vmem' and sdst & c.src:
            n = max(n, 5)
        if c.kind in ('salu', 'br') and sdst & c.src:
            n = max(n, 3)
        if c.kind == 'br' and ('s', 'vcc') in sdst and 'vcc' in c.mn:
            n = max(n, 5)
        if c.kind == 'br' and ('s', 'exec') in sdst and 'exec' in c.mn:
            n = max(n, 5)
    if p.kind == 'mfma':
        tbl = {4: (8, 6), 8: (12, 10), 16: (20, 18)}[p.passes]
        if c.kind == 'mfma':
            t = c.text.split(';')[0]
            ops = split_ops(t.split(None, 1)[1])
            ab = regs_of(ops[1]) | regs_of(ops[2])
            cc = regs_of(ops[3].split()[0])
            if vdst & ab:
                n = max(n, tbl[0])
            if vdst & cc and not (cc == vdst and c.passes == p.passes):
                n = max(n, tbl[1])
            if vdst & c.dst and not (cc == vdst and c.dst == vdst) and not (vdst & cc):
                n = max(n, tbl[1])
        elif c.kind in ('valu', 'ds', 'vmem'):
            if vdst & (c.src | c.dst):
                n = max(n, tbl[0])
        if c.kind == 'valu':
            t = p.text.split(';')[0]
            ops = split_ops(t.split(None, 1)[1])
            cc = regs_of(ops[3].split()[0])
            if cc & c.dst:
                n = max(n, {4: 3, 8: 7, 16: 15}[p.passes])
    if p.kind == 'salu' and ('s', 'm0') in sdst and c.lds_dma:
        n = max(n, 1)
    if p.kind == 'vmem' and p.wide_store:
        if c.kind == 'valu' and p.store_data() & c.dst:
            n = max(n, 2)
        elif p.store_data() & c.dst:
            n = max(n, 1)
    return n


class Tok:
    __slots__ = ('cls', 'idx')

    def __init__(self, cls, idx):
        self.cls, self.idx = cls, idx


class G:
    def __init__(self):
        self.items = []
        self.nvm = 0
        self.nlg = 0
        self.vm_done = 0
        self.lg_done = 0
        self.smem_out = False

    def raw(self, s):
        self.items.append(s)

    def label(self, name):
        self.items.append(name + ':')

    def i(self, text):
        tok = None
        for line in text.strip().split('\n'):
            line = line.strip()
            if not line or line.startswith(';'):
                continue
            if line.endswith(':'):
                self.items.append(line)
                continue
            ins = Ins(line)
            self.items.append(ins)
            if ins.kind == 'vmem':
                self.nvm += 1
                tok = Tok('vm', self.nvm)
            elif ins.kind == 'ds':
                self.nlg += 1
                tok = Tok('lg', self.nlg)
            elif ins.kind == 'smem':
                self.smem_out = True
            elif ins.mn == 's_waitcnt':
                m = re.search(r'vmcnt\((\d+)\)', line)
                if m:
                    self.vm_done = max(self.vm_done, self.nvm - int(m.group(1)))
                m = re.search(r'lgkmcnt\((\d+)\)', line)
                if m:
                    if int(m.group(1)) == 0:
                        self.smem_out = False
                        self.lg_done = self.nlg
                    elif not self.smem_out:
                        self.lg_done = max(self.lg_done, self.nlg - int(m.group(1)))
        return tok

    def wait(self, *toks):
        vm = max([t.idx for t in toks if t is not None and t.cls == 'vm'], default=0)
        lg = max([t.idx for t in toks if t is not None and t.cls == 'lg'], default=0)
        s = []
        if vm > self.vm_done:
            s.append('vmcnt(%d)' % min(63, self.nvm - vm))
        if lg > self.lg_done:
            n = 0 if self.smem_out else min(15, self.nlg - lg)
            s.append('lgkmcnt(%d)' % n)
        if s:
            self.i('s_waitcnt ' + ' '.join(s))

    def wait_all(self):
        self.i('s_waitcnt vmcnt(0) lgkmcnt(0)')

    def wait_lg0(self):
        self.i('s_waitcnt lgkmcnt(0)')

    def reset_counts(self):
        self.vm_done = self.nvm
        self.lg_done = self.nlg

    def finalize(self, window=24):
        out = []
        hist = []
        nnop = 0
        for it in self.items:
            if isinstance(it, str):
                out.append(it)
                continue
            need = 0
            dist = 0
            for p in reversed(hist):
                n = need_states(p, it)
                if n > dist:
                    need = max(need, n - dist)
                dist += p.nstates
                if dist >= window:
                    break
            while need > 0:
                k = min(need, 16)
                nop = Ins('s_nop %d' % (k - 1))
                out.append(nop)
                hist.append(nop)
                need -= k
                nnop += 1
            out.append(it)
            hist.append(it)
            if len(hist) > 64:
                hist = hist[-48:]
        self.nnop = nnop
        lines = []
        for it in out:
            if isinstance(it, str):
                lines.append(it)
            else:
                lines.append('\t' + it.text)
        return '\n'.join(lines) + '\n'


def vr(a, n=1):
    return 'v%d' % a if n == 1 else 'v[%d:%d]' % (a, a + n - 1)


def ar(a, n=1):
    return 'a%d' % a if n == 1 else 'a[%d:%d]' % (a, a + n - 1)


def sr(a, n=1):
    return 's%d' % a if n == 1 else 's[%d:%d]' % (a, a + n - 1)


def kstart(name):
    return '.globl %s\n.p2align 8\n.type %s,@function\n%s:' % (name, name, name)


def kdesc(name, vgpr, accum, sgpr=102):
    return ('.amdhsa_kernel %s\n  .amdhsa_next_free_vgpr %d\n  .amdhsa_next_free_sgpr %d\n  .amdhsa_accum_offset %d\n'
            '  .amdhsa_group_segment_fixed_size 0\n  .amdhsa_kernarg_size 144\n  .amdhsa_user_sgpr_count 2\n'
            '  .amdhsa_user_sgpr_kernarg_segment_ptr 1\n  .amdhsa_system_sgpr_workgroup_id_x 1\n'
            '  .amdhsa_float_denorm_mode_32 3\n.end_amdhsa_kernel\n') % (name, vgpr, sgpr, accum)


import os
STAMPS = os.environ.get('STAMPS', '') != ''

def stamp(g, k):
    if not STAMPS: return
    g.i('s_memtime s[94:95]\ns_memrealtime s[92:93]\ns_waitcnt lgkmcnt(0)\ns_mov_b32 s%d, s94\ns_mov_b32 s%d, s92' % (70 + 2 * k, 71 + 2 * k))

def stamp_rt(g, k):
    pass

def stamp_flush(g, n, wg, vtmp=250):
    if not STAMPS: return
    n = min(n, 11)
    lab = 'L_stamp_%d' % len(g.items)
    g.i('s_cmp_lg_u32 s2, %d\ns_cbranch_scc1 %s' % (wg, lab))
    g.i('s_load_dwordx2 s[68:69], s[0:1], 128\ns_waitcnt lgkmcnt(0)')
    g.i('v_mov_b32 v%d, 0' % vtmp)
    g.i('v_cmp_eq_u32 vcc, 0, v0\ns_and_saveexec_b64 s[66:67], vcc\ns_cbranch_execz %s_r' % lab)
    for k in range(2 * n):
        g.i('v_mov_b32 v%d, s%d\nglobal_store_dword v%d, v%d, s[68:69] offset:%d' % (vtmp + 1, 70 + k, vtmp, vtmp + 1, 4 * k))
    g.label(lab + '_r')
    g.i('s_mov_b64 exec, s[66:67]')
    g.label(lab)


TL = os.environ.get('TL', '') != ''
TL_BASE = 48 << 20
def tl_entry(g):
    if not TL: return
    g.i('s_memrealtime s[96:97]')
def tl_exit(g, kidx, vtmp=248):
    if not TL: return
    lab = 'L_tl_%d' % len(g.items)
    g.i('s_waitcnt vmcnt(0) lgkmcnt(0)')
    g.i('s_mov_b64 exec, -1')
    g.i('s_memrealtime s[98:99]\ns_load_dwordx2 s[100:101], s[0:1], 136\ns_waitcnt lgkmcnt(0)')
    g.i('v_lshrrev_b32 v%d, 6, v0\nv_mov_b32 v%d, s96\nv_mov_b32 v%d, s98' % (vtmp, vtmp + 2, vtmp + 3))
    g.i('s_lshl_b32 s96, s2, 2\nv_add_u32 v%d, s96, v%d\nv_lshlrev_b32 v%d, 3, v%d' % (vtmp, vtmp, vtmp, vtmp))
    g.i('v_add_u32 v%d, %d, v%d' % (vtmp, TL_BASE + kidx * 65536, vtmp))
    g.i('global_store_dwordx2 v%d, v[%d:%d], s[100:101]' % (vtmp, vtmp + 2, vtmp + 3))


HT = os.environ.get('HT', '') != ''
HT_BASE = 47 << 20
def ht_start(g, kidx, vt):
    if not HT: return
    lab = 'L_ht_%d_%d' % (kidx, len(g.items))
    g.i('s_cmp_lg_u32 s2, 0\ns_cbranch_scc1 %s' % lab)
    g.i('s_memrealtime s[96:97]\ns_load_dwordx2 s[100:101], s[0:1], 136\ns_waitcnt lgkmcnt(0)')
    g.i('v_mov_b32 v%d, %d\nv_mov_b32 v%d, s96\nglobal_store_dword v%d, v%d, s[100:101]' % (vt, HT_BASE + 4 * kidx, vt + 1, vt, vt + 1))
    g.i('s_waitcnt vmcnt(0)')
    g.label(lab)
def ht_final(g, wg, nk, own_index, vt):
    if not HT: return
    lab = 'L_htf_%d' % len(g.items)
    g.i('s_cmp_lg_u32 s2, %d\ns_cbranch_scc1 %s' % (wg, lab))
    g.i('s_waitcnt vmcnt(0)\ns_mov_b64 exec, -1')
    g.i('s_memrealtime s[96:97]\ns_load_dwordx2 s[100:101], s[0:1], 136\ns_load_dwordx2 s[98:99], s[0:1], 128\ns_waitcnt lgkmcnt(0)')
    g.i('v_and_b32 v%d, 7, v0\nv_lshlrev_b32 v%d, 2, v%d\nv_add_u32 v%d, %d, v%d' % (vt, vt, vt, vt + 1, HT_BASE, vt))
    g.i('global_load_dword v%d, v%d, s[100:101] sc1\ns_waitcnt vmcnt(0)' % (vt + 2, vt + 1))
    g.i('v_mov_b32 v%d, s96\nv_cmp_eq_u32 vcc, %d, v0\ns_nop 1\nv_cndmask_b32 v%d, v%d, v%d, vcc' % (vt + 3, nk, vt + 2, vt + 2, vt + 3))
    g.i('v_cmp_gt_u32 vcc, 8, v0\ns_and_saveexec_b64 s[96:97], vcc\ns_cbranch_execz %s' % lab)
    g.i('global_store_dword v%d, v%d, s[98:99]' % (vt, vt + 2))
    g.label(lab)


def code_prefetch(g, start_label, end_label, nloads, vtmp, stmp, wave_sgpr=None):
    lab = 'L_cpf_%s' % start_label
    g.i('s_getpc_b64 s[%d:%d]' % (stmp, stmp + 1))
    g.label(lab)
    g.i('s_add_u32 s%d, s%d, %s-%s\ns_addc_u32 s%d, s%d, -1' % (stmp, stmp, start_label, lab, stmp + 1, stmp + 1))
    g.i('s_mov_b32 s%d, %s-%s-4' % (stmp + 2, end_label, start_label))
    g.i('v_lshlrev_b32 v%d, 7, v0' % vtmp)
    for k in range(nloads):
        g.i('v_min_u32 v%d, s%d, v%d\nv_and_b32 v%d, -4, v%d' % (vtmp + 1, stmp + 2, vtmp, vtmp + 1, vtmp + 1))
        g.i('global_load_dword v%d, v%d, s[%d:%d]' % (vtmp + 2 + k, vtmp + 1, stmp, stmp + 1))
        if k + 1 < nloads: g.i('v_add_u32 v%d, 32768, v%d' % (vtmp, vtmp))
```

```python
import sys, os, re, importlib
sys.path.insert(0, 'dev')
from glib import *
from layout import *
import k1

HDR = open('adaLN_cond__ssm_conv_s4__geglu_ffn__prompt.s.ref').read().split('; Override')[0]

NOTES = """;
;     hand-off inside the launch: write-through stores, vmcnt(0), barrier, atomic on the counter in d_debug; consumers poll, then load with sc1
"""

def build(kernels, out):
    launches, bodies, descs = [], [], []
    for (name, grid, lds, fn, vg, acc) in kernels:
        launches.append('; @launch kernel=%s grid=(%d,1,1) block=(256,1,1) lds=%d' % (name, grid, lds))
        g = G(); fn(g)
        body = g.finalize()
        sc = os.environ.get('SC1', 'k1,k2,k3,k4')
        if name[:2] in sc.split(','):
            out_lines = []
            for line in body.split('\n'):
                t = line.split(';')[0].rstrip()
                if re.match(r'\s*buffer_store_dwordx[24]\b', t) and ' sc1' not in t:
                    line = t + ' sc1'
                out_lines.append(line)
            body = '\n'.join(out_lines)
        bodies.append(body)
        descs.append(kdesc(name, vg, acc))
        print('%s: %d items, %d nops' % (name, len(g.items), g.nnop), file=sys.stderr)
    s = HDR + '\n'.join(launches) + '\n' + NOTES + '.amdgcn_target "amdgcn-amd-amdhsa--gfx950"\n.text\n' + '\n'.join(bodies) + 'L_text_pf_end:\n'
    s += '.section .rodata,"a"\n.p2align 6\n' + '.p2align 6\n'.join(descs)
    open(out, 'w').write(s)
    print('wrote', out, len(s), 'bytes', file=sys.stderr)

def kernels():
    ks = [] if os.environ.get('FRONT', 'k12') == 'k12' else [('k1_prep_kernel', k1.K1_GRID, k1.K1_LDS, k1.k1, 224, 224)]
    for modname in os.environ.get('KLIST', 'k12,k34').split(','):
        try:
            m = importlib.import_module(modname)
        except ModuleNotFoundError:
            continue
        ks.append(m.KERNEL)
    return ks

if __name__ == '__main__':
    out = sys.argv[1] if len(sys.argv) > 1 else 'full.s'
    build(kernels(), out)
```
